```python
import torch

def _softmax(x, axis=-1):
    return torch.softmax(x, dim=axis)
def _gelu(x):
    return torch.nn.functional.gelu(x, approximate="tanh")
def _silu(x):
    return torch.nn.functional.silu(x)
def _sigmoid(x):
    return torch.sigmoid(x)
def _layernorm(x, axis=-1, eps=1e-5):
    m = x.mean(dim=axis, keepdim=True)
    v = x.var(dim=axis, keepdim=True, unbiased=False)
    return (x - m) / torch.sqrt(v + eps)
def _scatter_add(tgt, idx, src, axis=0):
    return tgt.clone().index_add_(axis, idx, src)
def _segment_sum(src, seg, n):
    out = torch.zeros((n,) + src.shape[1:], dtype=src.dtype)
    return out.index_add_(0, seg, src)
def _pad(x, pw):
    flat = tuple(v for pair in reversed(pw) for v in pair)
    return torch.nn.functional.pad(x, flat)

kernel_name = 'interleave_layers__mha_block__dense_activation_silu__prompt'

def setup_inputs():

    _w = (lambda a: (lambda t: t.to(torch.bfloat16) if t.is_floating_point() else t)(torch.as_tensor(a)))
    def _A_setup():
        B, S, D, H = 1, 2048, 512, 32
        return {
            "x": _w((lambda *s: torch.randn(*s, dtype=torch.bfloat16) * 0.05)(B, S, D)),
            "wqkv": _w((lambda *s: torch.randn(*s, dtype=torch.bfloat16) * 0.05)(D, 3 * D)),
            "wo": _w((lambda *s: torch.randn(*s, dtype=torch.bfloat16) * 0.05)(D, D)),
        }
    _A_in = _A_setup()

    def _B_setup():
        B, S, D, F = 1, 2048, 512, 1792
        return {
            "x": _w((lambda *s: torch.randn(*s, dtype=torch.bfloat16) * 0.05)(B, S, D)),
            "w1": _w((lambda *s: torch.randn(*s, dtype=torch.bfloat16) * 0.8)(D, F) * (D ** -0.5)),
            "w2": _w((lambda *s: torch.randn(*s, dtype=torch.bfloat16) * 0.2)(F, D) * (F ** -0.5)),
        }
    _B_in = _B_setup()

    return {
        "A_x": _A_in["x"],
        "A_wqkv": _A_in["wqkv"],
        "A_wo": _A_in["wo"],
        "B_x": _B_in["x"],
        "B_w1": _B_in["w1"],
        "B_w2": _B_in["w2"],
    }

def reference(A_x, A_wqkv, A_wo, B_x, B_w1, B_w2):
    def _A_ref(x, wqkv, wo):
        B, S, D = x.shape
        H = 32
        Dh = D // H
        qkv = (lambda x, *d: x.permute(*d))((x @ wqkv).reshape(B, S, 3, H, Dh), 2, 0, 3, 1, 4)
        q, k, v = qkv[0], qkv[1], qkv[2]
        scores = torch.einsum("bhqd,bhkd->bhqk", q, k) * (Dh ** -0.5)
        p = _softmax(scores, axis=-1)
        o = torch.einsum("bhqk,bhkd->bhqd", p, v)
        return (lambda x, *d: x.permute(*d))(o, 0, 2, 1, 3).reshape(B, S, D) @ wo

    def _B_ref(x, w1, w2):
        h = torch.einsum("bsd,df->bsf", x, w1)
        h = _silu(h)
        out = torch.einsum("bsf,fd->bsd", h, w2)
        return out

    x = A_x
    x = x + _A_ref(_layernorm(x, axis=-1), A_wqkv, A_wo)
    x = x + _B_ref(_layernorm(x, axis=-1), B_w1, B_w2)
    x = x + _A_ref(_layernorm(x, axis=-1), A_wqkv, A_wo)
    x = x + _B_ref(_layernorm(x, axis=-1), B_w1, B_w2)
    return x
```

```python
import re

REG_RE = re.compile(r'^(-|\|)?(abs\()?([vsa])(\d+|\[(\d+):(\d+)\])\)?\|?$')

def regs_of(tok):
    tok = tok.strip()
    if tok in ('vcc', 'exec', 'm0', 'scc'):
        return [tok]
    if tok in ('vcc_lo', 'vcc_hi'): return ['vcc']
    if tok in ('exec_lo', 'exec_hi'): return ['exec']
    m = REG_RE.match(tok)
    if not m: return []
    k = m.group(3)
    if m.group(5) is not None:
        return [f'{k}{i}' for i in range(int(m.group(5)), int(m.group(6)) + 1)]
    return [f'{k}{int(m.group(4))}']

TRANS = ('v_exp_f32', 'v_log_f32', 'v_rcp_f32', 'v_rsq_f32', 'v_sqrt_f32', 'v_sin_f32', 'v_cos_f32')

class Ins:
    def __init__(self, text):
        self.text = text
        t = text.split(';')[0].strip()
        self.label = None
        self.op = None
        self.w = []; self.r = []
        self.target = None
        self.cls = 'other'
        if t.endswith(':'):
            self.label = t[:-1]; self.cls = 'label'; return
        if t.startswith('.') or not t:
            self.cls = 'dir'; return
        parts = t.split(None, 1)
        op = self.op = parts[0]
        rest = parts[1] if len(parts) > 1 else ''
        ops = [x.strip() for x in re.split(r',(?![^\[]*\])', rest)] if rest else []
        mods = ''
        if ops:
            sp = ops[-1].split(None, 1)
            ops[-1] = sp[0]
            mods = sp[1] if len(sp) > 1 else ''
        self.ops = ops; self.mods = mods
        R = lambda i: regs_of(ops[i]) if i < len(ops) else []
        allr = lambda a: [x for i in range(a, len(ops)) for x in R(i)]
        if op.startswith('v_mfma'):
            self.cls = 'mfma'; self.w = R(0); self.ab = R(1) + R(2); self.c = R(3); self.r = self.ab + self.c
            self.passes = 8 if '32x32' in op else 4
        elif op.startswith('v_smfmac'):
            self.cls = 'mfma'; self.w = R(0); self.ab = R(1) + R(2) + R(3); self.c = R(0); self.r = self.ab + self.c
            self.passes = 8 if '32x32' in op else 4
        elif op.startswith('v_permlane') and 'swap' in op:
            self.cls = 'valu'; self.w = R(0) + R(1); self.r = R(0) + R(1)
        elif op.startswith('v_cmpx'):
            self.cls = 'valu'; self.w = R(0) + ['exec']; self.r = allr(1)
        elif op.startswith('v_'):
            self.cls = 'valu'; self.w = R(0); self.r = allr(1)
            if op.startswith(('v_fmac', 'v_dot2c', 'v_pk_fmac')) or 'UNUSED_PRESERVE' in mods: self.r += R(0)
            if op.startswith(('v_add_co', 'v_sub_co', 'v_addc_co', 'v_mad_u64')): self.w += R(1); self.r = allr(2)
            if op.startswith('v_writelane'): self.r += R(0)
        elif op.startswith('ds_read') or op.startswith('ds_bpermute') or op.startswith('ds_swizzle'):
            self.cls = 'ds'; self.w = R(0); self.r = allr(1)
        elif op.startswith('ds_'):
            self.cls = 'ds'; self.r = allr(0)
        elif op.startswith('buffer_load'):
            self.cls = 'vm'
            if ' lds' in ' ' + mods: self.r = allr(0) + ['m0']; self.dma = True
            else: self.w = R(0); self.r = allr(1)
        elif op.startswith('buffer_store') or op.startswith('buffer_atomic'):
            self.cls = 'vm'; self.r = allr(0); self.store = True; self.data = R(0)
            if op.startswith('buffer_atomic') and 'sc0' in mods: self.w = R(0)
        elif op.startswith('global_load'):
            self.cls = 'vm'; self.w = R(0); self.r = allr(1)
        elif op.startswith('global_store'):
            self.cls = 'vm'; self.r = allr(0); self.store = True; self.data = R(1)
        elif op.startswith('global_atomic'):
            self.cls = 'vm'
            if 'sc0' in mods: self.w = R(0); self.r = allr(1)
            else: self.r = allr(0)
        elif op.startswith(('s_load', 's_memtime', 's_memrealtime')):
            self.cls = 'smem'; self.w = R(0); self.r = allr(1)
        elif op.startswith(('s_branch', 's_cbranch')):
            self.cls = 'branch'; self.target = ops[0]
            if 'vcc' in op: self.r = ['vcc']
            if 'exec' in op: self.r = ['exec']
        elif op in ('s_waitcnt', 's_barrier', 's_nop', 's_endpgm', 's_setprio', 's_sleep'):
            self.cls = op
        elif op.startswith('s_cmp') or op.startswith('s_bitcmp'):
            self.cls = 'salu'; self.r = allr(0)
        elif op.startswith('s_'):
            self.cls = 'salu'; self.w = R(0); self.r = allr(1)
            if 'saveexec' in op: self.w += ['exec']; self.r += ['exec']
            if op.startswith(('s_addk', 's_mulk')): self.r += R(0)
        else:
            raise ValueError('unknown op ' + text)
    def states(self):
        if self.cls in ('label', 'dir'): return 0
        if self.op == 's_nop': return int(self.ops[0], 0) + 1
        return 1

class Gen:
    def __init__(self):
        self.ins = []
        self.reset_track()
        self.uid = 0
    def reset_track(self):
        self.vm = []
        self.lg = []
        self.smem_out = False
    def lab(self, base):
        self.uid += 1
        return f'{base}_{self.uid}'
    def raw(self, text):
        i = Ins(text); self.ins.append(i); return i
    def _need(self, regs):
        regs = set(regs)
        nv = None; nl = None
        for idx, s in enumerate(self.vm):
            if s & regs: nv = len(self.vm) - 1 - idx
        for idx, s in enumerate(self.lg):
            if s & regs: nl = len(self.lg) - 1 - idx
        return nv, nl
    def wait(self, vm=None, lg=None):
        parts = []
        if vm is not None and vm < len(self.vm):
            vm = min(vm, 63); parts.append(f'vmcnt({vm})'); self.vm = self.vm[len(self.vm) - vm:] if vm else []
        if lg is not None and lg < len(self.lg):
            if self.smem_out: lg = 0
            lg = min(lg, 15); parts.append(f'lgkmcnt({lg})'); self.lg = self.lg[len(self.lg) - lg:] if lg else []
            if lg == 0: self.smem_out = False
        if parts: self.raw('s_waitcnt ' + ' '.join(parts))
    def wait_for(self, *toks):
        regs = []
        for t in toks: regs += regs_of(t)
        nv, nl = self._need(regs)
        self.wait(nv, nl)
    def force_wait(self, text):
        m = re.search(r'vmcnt\((\d+)\)', text)
        if m:
            n = int(m.group(1));  self.vm = self.vm[len(self.vm) - n:] if 0 < n < len(self.vm) else ([] if n == 0 else self.vm)
        m = re.search(r'lgkmcnt\((\d+)\)', text)
        if m:
            n = int(m.group(1));  self.lg = self.lg[len(self.lg) - n:] if 0 < n < len(self.lg) else ([] if n == 0 else self.lg)
            if n == 0: self.smem_out = False
        self.raw('s_waitcnt ' + text)
    def e(self, text):
        for t in text.split('\n'):
            t = t.strip()
            if not t: continue
            if t.startswith('s_waitcnt'):
                self.force_wait(t[len('s_waitcnt'):].strip()); continue
            i = Ins(t)
            if i.cls not in ('label', 'dir'):
                nv, nl = self._need(i.r + i.w)
                self.wait(nv, nl)
            self.ins.append(i)
            if i.cls == 'vm': self.vm.append(set(i.w))
            elif i.cls == 'ds': self.lg.append(set(i.w))
            elif i.cls == 'smem': self.lg.append(set(i.w)); self.lg.append(set(i.w)); self.smem_out = True
    def nvm(self): return len(self.vm)
    def text(self):
        out = []
        for i in self.ins:
            out.append(i.text if i.cls in ('label', 'dir') else '  ' + i.text)
        return '\n'.join(out) + '\n'

def check_hazards(ins, maxd=22):
    n = len(ins)
    labels = {x.label: k for k, x in enumerate(ins) if x.label}
    preds = [[] for _ in range(n)]
    for k, x in enumerate(ins):
        if k + 1 < n and x.op not in ('s_branch', 's_endpgm'): preds[k + 1].append(k)
        if x.cls == 'branch': preds[labels[x.target]].append(k)
    errs = []
    def need(p, c):
        pw = set(p.w); cr = set(c.r); cw = set(c.w)
        req = 0
        if p.cls == 'mfma':
            P = p.passes
            if c.cls == 'mfma':
                if pw & set(c.ab): req = max(req, P + 4)
                ov = pw & set(c.c)
                if ov and not (set(c.c) == pw and c.passes == P): req = max(req, P + 2)
                if (pw & cw) and not ov: req = max(req, P + 2)
            elif c.cls in ('valu', 'vm', 'ds'):
                if pw & (cr | cw): req = max(req, P + 4)
                if c.cls == 'valu' and set(p.c) & cw: req = max(req, P - 1)
        if p.cls == 'valu':
            vw = {x for x in pw if x[0] in 'va' and x != 'vcc'}
            sw = {x for x in pw if x[0] == 's' or x == 'vcc'}
            if c.cls == 'mfma' and vw & cr: req = max(req, 2)
            if c.cls == 'mfma' and 'exec' in pw: req = max(req, 4)
            if c.cls == 'vm' and sw & cr: req = max(req, 5)
            if c.cls == 'valu':
                if sw & cr: req = max(req, 4 if c.op.startswith(('v_readlane', 'v_writelane')) else 2)
                if c.op.startswith('v_cndmask') and 'vcc' in sw and len(c.ops) < 4: req = max(req, 2)
                if c.op.startswith(('v_readfirstlane', 'v_readlane')) and vw & cr: req = max(req, 1)
                if c.op.startswith('v_permlane') and vw & cr: req = max(req, 2)
                if ('dpp' in c.op or 'row_' in c.mods or 'quad_perm' in c.mods) and vw & cr: req = max(req, 2)
                if p.op.startswith(TRANS) and not c.op.startswith(TRANS) and vw & cr: req = max(req, 1)
                if p.op.startswith('v_dot2') and vw & (cr | cw):
                    same = c.op == p.op
                    if not (same and c.op.startswith('v_dot2c') and (vw & cw) and not (vw & set(regs_of(c.ops[1]) + regs_of(c.ops[2])))): req = max(req, 3)
                if ('sdwa' in p.op or 'op_sel' in p.mods) and vw & cr: req = max(req, 1)
            if c.cls in ('vm', 'ds') and p.op.startswith(TRANS) and vw & cr: req = max(req, 1)
            if c.cls in ('vm', 'ds') and p.op.startswith('v_dot2') and vw & cr: req = max(req, 3)
            if c.cls == 'salu' and sw & cr: req = max(req, 1)
            if c.cls == 'branch' and 'vcc' in sw and 'vcc' in cr: req = max(req, 1)
        if p.cls == 'salu' and 'm0' in pw and c.cls == 'vm' and getattr(c, 'dma', False): req = max(req, 1)
        if p.cls == 'vm' and getattr(p, 'store', False) and ('x4' in p.op or 'x3' in p.op):
            if set(p.data) & cw: req = max(req, 2 if c.cls == 'valu' else 1)
        return req
    for k, c in enumerate(ins):
        if c.cls in ('label', 'dir', 's_nop', 's_waitcnt', 's_barrier'): continue
        seen = {}
        stack = [(p, 0) for p in preds[k]]
        while stack:
            p, d = stack.pop()
            if d > maxd or seen.get(p, 99) <= d: continue
            seen[p] = d
            x = ins[p]
            if x.cls not in ('label', 'dir'):
                rq = need(x, c)
                if rq > d: errs.append(f'hazard: need {rq} have {d}: [{p}] {x.text}  ->  [{k}] {c.text}')
            for q in preds[p]: stack.append((q, d + x.states()))
    return errs

def check_waits(ins):
    n = len(ins)
    labels = {x.label: k for k, x in enumerate(ins) if x.label}
    errs = set(); seen = set()
    stack = [(0, (), ())]
    steps = 0
    while stack:
        pc, vm, lg = stack.pop()
        while pc < n:
            steps += 1
            if steps > 60000000: errs.add('check_waits: too many steps'); return sorted(errs)
            x = ins[pc]
            if x.cls == 'label':
                key = (pc, tuple(x for x in vm if x), len(vm) if any(vm) else 0, lg)
                if key in seen: break
                seen.add(key)
            if x.cls == 's_waitcnt':
                m = re.search(r'vmcnt\((\d+)\)', x.text)
                if m: k = int(m.group(1)); vm = vm[len(vm) - k:] if 0 < k < len(vm) else (() if k == 0 else vm)
                m = re.search(r'lgkmcnt\((\d+)\)', x.text)
                if m:
                    k = int(m.group(1))
                    if k == 0: lg = ()
                    elif not any(s for s, _ in lg): lg = lg[len(lg) - k:] if k < len(lg) else lg
            elif x.cls not in ('label', 'dir'):
                t = set(x.r) | set(x.w)
                for s in vm:
                    if s & t: errs.add(f'vm in flight {sorted(s & t)[:2]} at [{pc}] {x.text}')
                for _, s in lg:
                    if s & t: errs.add(f'lgkm in flight {sorted(s & t)[:2]} at [{pc}] {x.text}')
                if x.cls == 'vm': vm = (vm + (frozenset(x.w),))[-64:]
                elif x.cls == 'ds': lg = (lg + ((False, frozenset(x.w)),))[-40:]
                elif x.cls == 'smem': lg = (lg + ((True, frozenset(x.w)),))[-40:]
            if x.op == 's_endpgm': break
            if x.cls == 'branch':
                stack.append((labels[x.target], vm, lg))
                if x.op == 's_branch': break
            pc += 1
    return sorted(errs)
```

```python
import sys, math
from asmlib import Gen, check_hazards, check_waits

NAME = 'interleave_layers__mha_block__dense_activation_silu__prompt'
PROF = '--prof' in sys.argv
STOP = None
for a in sys.argv:
    if a.startswith('--stop='): STOP = a.split('=')[1]
FORCE_SAFE = '--safe' in sys.argv
FORCE_SLOW = '--slowattn' in sys.argv

MB = 1 << 20
FL_LOC = 0; FL_GLB = 4096; PROFB = 65536
ST1 = [1 * MB, 1 * MB + 262144]; ST2 = 1 * MB + 524288
QB = [2 * MB, 8 * MB]
OB = [14 * MB, 16 * MB]; X1B = [18 * MB, 20 * MB]; X2B = 22 * MB; HB = [24 * MB, 32 * MB]
WS_SIZE = 40 * MB
LDS = 163840
SMALL = 161792
CS = SMALL
VST = SMALL + 512
BCAST = SMALL + 1536
XST = 98304
KV0 = 28672; STG = 16640
W1B = 30720
RED1 = 65536
W2H = 77824; W2RES = 38
RED2 = 114688
SX, SWQ, SWO, SW1, SW2, SOUT, SWS = 's[4:7]', 's[8:11]', 's[12:15]', 's[16:19]', 's[20:23]', 's[24:27]', 's[28:31]'
DBG = 's[32:33]'; WSP = 's[34:35]'
sW, sG, sR, sMODE, sLAY, sEP, sGEP = 's36', 's37', 's38', 's39', 's40', 's41', 's42'
sRETRY = 's43'
sQ, sO, sX1, sH, sST1 = 's60', 's61', 's62', 's63', 's64'
RES = 248
ONES = '0x3f803f80'
LOG2E = 1.4426950408889634

g = Gen()
e = g.e
def vr(a, n=4): return f'v[{a}:{a+n-1}]'
def fl(x):
    import struct
    return hex(struct.unpack('<I', struct.pack('<f', x))[0])

def lane(v):
    e(f'v_mbcnt_lo_u32_b32 v{v}, -1, 0\nv_mbcnt_hi_u32_b32 v{v}, -1, v{v}')

stamp_idx = {}
def stamp(name, role):
    if not PROF: return
    key = (name, role)
    if key not in stamp_idx: stamp_idx[key] = len([k for k in stamp_idx if k[1] == role])
    idx = stamp_idx[key]
    e(f's_memrealtime s[58:59]')
    e(f's_lshl_b32 s57, s2, 9\ns_mul_i32 s56, {sLAY}, 128\ns_add_u32 s57, s57, s56\ns_add_u32 s57, s57, {PROFB + role * 256 + idx * 4}')
    e('s_waitcnt lgkmcnt(0)')
    e(f'v_mov_b32 v246, s57\nv_mov_b32 v247, s58')
    e(f'global_store_dword v246, v247, {WSP}')

def merge(slots, fill, start=0, per=None):
    n = len(slots) - start
    k = 0
    for i, s in enumerate(slots):
        for x in s:
            if callable(x): x()
            else: e(x)
        if i >= start:
            tgt = len(fill) if i == len(slots) - 1 else (min(len(fill), (i - start + 1) * per) if per else (len(fill) * (i - start + 1)) // n)
            while k < tgt:
                x = fill[k]; k += 1
                if callable(x): x()
                else: e(x)

def barrier(): e('s_barrier')

def bounded_poll(load, test, vdst):
    L = g.lab('POLL'); X = g.lab('POLLX')
    e('s_mov_b32 s50, 0x40000')
    e(f'{L}:')
    e(load)
    e('s_waitcnt vmcnt(0)')
    e(test)
    e(f's_sub_u32 s50, s50, 1\ns_cmp_eq_u32 s50, 0\ns_cbranch_scc1 {X}')
    e(f's_cbranch_vccnz {L}')
    e(f'{X}:')

def arrive_local():
    A = g.lab('ARS'); B = g.lab('ARD')
    e(f's_add_u32 {sEP}, {sEP}, 1')
    e(f's_lshl_b32 s50, {sG}, 8\ns_lshl_b32 s51, {sR}, 2\ns_add_u32 s50, s50, s51')
    e(f'v_mov_b32 v1, s50\nv_mov_b32 v2, {sEP}')
    e('s_mov_b64 exec, 1')
    e(f's_cmp_lg_u32 {sMODE}, 0\ns_cbranch_scc1 {A}')
    e(f'global_store_dword v1, v2, {WSP} offset:{FL_LOC}')
    e(f's_branch {B}')
    e(f'{A}:')
    e(f'global_store_dword v1, v2, {WSP} offset:{FL_LOC} sc1')
    e(f'{B}:')
    e('s_mov_b64 exec, -1')

def poll_local(half):
    lane(3)
    if half:
        e(f'v_and_b32 v3, 15, v3\ns_and_b32 s51, {sR}, 16\ns_lshl_b32 s51, s51, 2\ns_lshl_b32 s50, {sG}, 8\ns_add_u32 s50, s50, s51')
    else:
        e(f'v_and_b32 v3, 31, v3\ns_lshl_b32 s50, {sG}, 8')
    e('v_lshl_add_u32 v3, v3, 2, s50')
    bounded_poll(f'global_load_dword v4, v3, {WSP} offset:{FL_LOC} sc1', f'v_cmp_gt_u32 vcc, {sEP}, v4', 4)

def global_barrier():
    N = g.lab('GBN')
    e(f's_add_u32 {sGEP}, {sGEP}, 1')
    e(f's_cmp_lg_u32 {sR}, 0\ns_cbranch_scc1 {N}')
    poll_local(False)
    lane(3)
    e(f'v_and_b32 v3, 7, v3\nv_lshlrev_b32 v3, 8, v3\ns_lshl_b32 s50, {sG}, 2\ns_add_u32 s50, s50, {FL_GLB}\nv_add_u32 v3, s50, v3\nv_mov_b32 v2, {sGEP}')
    e('s_mov_b64 exec, 0xff')
    e(f'global_store_dword v3, v2, {WSP} sc1')
    e('s_mov_b64 exec, -1')
    e(f'{N}:')
    g.reset_track()
    lane(3)
    e(f'v_and_b32 v3, 7, v3\ns_lshl_b32 s50, {sG}, 8\ns_add_u32 s50, s50, {FL_GLB}\nv_lshl_add_u32 v3, v3, 2, s50')
    bounded_poll(f'global_load_dword v4, v3, {WSP} sc1', f'v_cmp_gt_u32 vcc, {sGEP}, v4', 4)

def register_start():
    e('s_getreg_b32 s44, hwreg(HW_REG_XCC_ID)\ns_and_b32 s44, s44, 15')
    e(f's_lshr_b32 s50, s2, 5\ns_lshl_b32 s50, s50, 8\ns_and_b32 s51, s2, 31\ns_lshl_b32 s51, s51, 2\ns_add_u32 s50, s50, s51')
    e(f's_lshr_b32 s51, s2, 3\ns_and_b32 s51, s51, 7\ns_lshl_b32 s51, s51, 8\ns_and_b32 s52, s2, 7\ns_lshl_b32 s52, s52, 2\ns_add_u32 s51, s51, s52\ns_add_u32 s51, s51, {FL_GLB}')
    e('v_mov_b32 v1, s50\nv_mov_b32 v2, s51\nv_mov_b32 v3, 0')
    e('s_mov_b64 exec, 1')
    e(f'global_store_dword v1, v3, {WSP} offset:{FL_LOC} sc1')
    e(f'global_store_dword v2, v3, {WSP} sc1')
    e('s_waitcnt vmcnt(0)')
    e('s_and_b32 s50, s2, 3\ns_lshl_b32 s50, s50, 3\ns_add_u32 s51, s44, 1\ns_lshl_b32 s51, s51, s50\ns_and_b32 s50, s2, 0xfc')
    e('v_mov_b32 v1, s50\nv_mov_b32 v2, s51')
    e(f'global_atomic_or v1, v2, {DBG} sc1')
    e('s_mov_b64 exec, -1')

def register_resolve():
    lane(3)
    e('v_lshlrev_b32 v5, 2, v3')
    test = ('v_and_b32 v6, 0xff, v4\nv_bfe_u32 v7, v4, 8, 8\nv_bfe_u32 v8, v4, 16, 8\nv_lshrrev_b32 v9, 24, v4\n'
            'v_min_u32 v10, v6, v7\nv_min3_u32 v10, v10, v8, v9\nv_cmp_eq_u32 vcc, 0, v10')
    bounded_poll(f'global_load_dword v4, v5, {DBG} sc1', test, 4)
    e(f's_mov_b32 {sMODE}, {1 if FORCE_SAFE else 0}')
    for x in range(8):
        e('s_mov_b32 s52, 0')
        for b in range(4):
            e(f'v_cmp_eq_u32 vcc, {x + 1}, v{6 + b}\ns_nop 0\ns_bcnt1_i32_b64 s51, vcc\ns_add_u32 s52, s52, s51')
        e(f's_cmp_lg_u32 s52, 32\ns_cselect_b32 s51, 1, 0\ns_or_b32 {sMODE}, {sMODE}, s51')
    e('s_add_u32 s53, s44, 1\ns_mov_b32 s52, 0')
    for b in range(4):
        e(f'v_add_u32 v10, {b}, v5\nv_cmp_gt_u32 s[54:55], s2, v10\nv_cmp_eq_u32 vcc, s53, v{6 + b}\ns_nop 0\ns_and_b64 vcc, vcc, s[54:55]\ns_bcnt1_i32_b64 s51, vcc\ns_add_u32 s52, s52, s51')
    e(f's_cmp_lg_u32 {sMODE}, 0\ns_cselect_b32 {sG}, {sG}, s44\ns_cselect_b32 {sR}, {sR}, s52')
    e(f's_lshl_b32 s50, {sR}, 8\ns_lshl_b32 s51, {sMODE}, 16\ns_or_b32 s50, s50, s51\ns_or_b32 s50, s50, {sG}')
    e(f'v_mov_b32 v1, {BCAST}\nv_mov_b32 v2, s50\nds_write_b32 v1, v2\ns_waitcnt lgkmcnt(0)')

def read_bcast():
    e(f'v_mov_b32 v1, {BCAST}\nds_read_b32 v2, v1\ns_waitcnt lgkmcnt(0)\nv_readfirstlane_b32 s50, v2\ns_nop 0')
    e(f's_and_b32 {sG}, s50, 7\ns_bfe_u32 {sR}, s50, 0x50008\ns_bfe_u32 {sMODE}, s50, 0x10010')

def store_act(lines):
    A = g.lab('STS'); B = g.lab('STD')
    for l in lines: g.wait_for(*[t.strip() for t in l.split(None, 1)[1].split(',')[:2]])
    e(f's_cmp_lg_u32 {sMODE}, 0\ns_cbranch_scc1 {A}')
    save = list(g.vm)
    for l in lines: e(l)
    e(f's_branch {B}')
    e(f'{A}:')
    g.vm = save
    for l in lines: e(l + ' sc1')
    e(f'{B}:')

def dma_loop(n, first, stride, body, cnt='s52'):
    L = g.lab('DL'); X = g.lab('DX')
    e(f's_mov_b32 {cnt}, {first}')
    e(f's_cmp_ge_u32 {cnt}, {n}\ns_cbranch_scc1 {X}')
    e(f'{L}:')
    body()
    e(f's_add_u32 {cnt}, {cnt}, {stride}\ns_cmp_lt_u32 {cnt}, {n}\ns_cbranch_scc1 {L}')
    e(f'{X}:')

def addr_qkvB():
    lane(9)
    e(f's_and_b32 s50, {sR}, 15\ns_lshr_b32 s51, s50, 1\ns_and_b32 s50, s50, 1')
    e('s_lshl_b32 s53, s50, 10\ns_lshl_b32 s54, s51, 7\ns_add_u32 s53, s53, s54')
    e('s_lshl_b32 s55, s50, 6\ns_add_u32 s54, s54, s55\ns_add_u32 s54, s54, 1920')
    for i in range(3):
        e(f'v_add_u32 v13, {64 * i}, v9\nv_mul_u32_u24 v14, 171, v13\nv_lshrrev_b32 v14, 11, v14')
        e('v_mul_u32_u24 v15, 12, v14\nv_sub_u32 v15, v13, v15')
        e('v_mov_b32 v16, s53\nv_mov_b32 v17, s54\nv_cmp_gt_u32 vcc, 8, v15\ns_nop 1\nv_cndmask_b32 v16, v17, v16, vcc')
        e(f'v_lshl_add_u32 v16, v15, 4, v16\nv_mul_u32_u24 v14, 3072, v14\nv_add_u32 v{10 + i}, v14, v16')

def dma_qkvB():
    addr_qkvB()
    e(f's_sub_u32 s56, {sW}, 5')
    def body():
        e('s_mul_i32 s53, s52, 3072\ns_mul_i32 s54, s52, 49152')
        for i in range(3):
            e(f's_add_u32 m0, s53, {1024 * i}\ns_nop 0')
            e(f'buffer_load_dwordx4 v{10 + i}, {SWQ}, s54 offen lds')
    dma_loop(32, 's56', 3, body)

def addr_128(v):
    lane(v)
    e(f'v_lshrrev_b32 v13, 3, v{v}\nv_and_b32 v14, 7, v{v}\nv_lshlrev_b32 v15, 1, v13\nv_and_b32 v15, 4, v15\nv_xor_b32 v14, v14, v15')
    e(f'v_lshlrev_b32 v13, 10, v13\nv_lshl_add_u32 v{v}, v14, 4, v13')

def addr_w1(v):
    lane(v)
    e(f'v_lshrrev_b32 v13, 4, v{v}\nv_and_b32 v14, 15, v{v}\nv_lshlrev_b32 v15, 2, v13\nv_xor_b32 v14, v14, v15')
    e(f'v_mul_u32_u24 v13, 3584, v13\nv_lshl_add_u32 v{v}, v14, 4, v13')

def s_fb(dst):
    e(f's_and_b32 {dst}, {sR}, 15\ns_min_u32 {dst}, {dst}, 13')

def dma_w1(lo, hi):
    addr_w1(9)
    s_fb('s55'); e('s_lshl_b32 s55, s55, 8')
    e(f's_add_u32 s56, {sW}, {lo - 5}')
    def body():
        e(f's_lshl_b32 s53, s52, 10\ns_add_u32 m0, s53, {W1B}\ns_mul_i32 s54, s52, 14336\ns_add_u32 s54, s54, s55')
        e(f'buffer_load_dwordx4 v9, {SW1}, s54 offen lds')
    dma_loop(hi, 's56', 3, body)

def dma_w2(kh, lo, hi, slot0):
    e(f's_add_u32 s56, {sW}, {lo - 5}')
    def body():
        e(f's_lshl_b32 s53, s52, 10\ns_add_u32 m0, s53, {kh * W2H + (slot0 - lo) * 1024}\ns_lshl_b32 s54, s52, 13\ns_add_u32 s54, s54, s55')
        if kh: e(f's_add_u32 s54, s54, {896 * 1024}')
        e(f'buffer_load_dwordx4 v9, {SW2}, s54 offen lds')
    dma_loop(hi, 's56', 3, body)
def dma_w2_setup():
    addr_128(9)
    e(f's_and_b32 s55, {sR}, 7\ns_lshl_b32 s55, s55, 7')

def tr_lane_parts(vl, t0):
    e(f'v_bfe_u32 v{t0}, v{vl}, 2, 2\nv_bfe_u32 v{t0+1}, v{vl}, 4, 1\nv_lshlrev_b32 v{t0+1}, 5, v{t0+1}\nv_and_b32 v{t0+2}, 3, v{vl}')
    e(f'v_lshl_add_u32 v{t0+1}, v{t0+2}, 3, v{t0+1}\nv_lshrrev_b32 v{t0+2}, 5, v{vl}')

def colsum(kind):
    X = g.lab('CSX')
    lane(9); tr_lane_parts(9, 13)
    if kind == 'qkv':
        e(f's_sub_u32 s50, {sW}, 5\ns_lshl_b32 s51, s50, 6')
        e('v_lshl_add_u32 v16, v15, 2, v13\nv_mul_u32_u24 v16, 192, v16\nv_add3_u32 v16, v16, v14, s51\nv_add_u32 v17, 49152, v16')
        step, second = 3072, 8 * 192
    else:
        e(f's_sub_u32 s50, {sW}, 4')
        e(f'v_xor_b32 v17, s50, v13\nv_lshlrev_b32 v17, 6, v17\nv_lshl_add_u32 v16, v15, 2, v13\nv_lshlrev_b32 v16, 8, v16\nv_add3_u32 v16, v16, v14, v17')
        e(f'v_add_u32 v16, {W1B}, v16\nv_add_u32 v17, 65536, v16')
        step, second = 4096, 2048
    e('v_mov_b32 v18, 0\nv_mov_b32 v19, 0')
    def rd(ks):
        b = 20 + 4 * (ks % 6); a = 16 + ks // 16; o = (ks % 16) * step
        e(f'ds_read_b64_tr_b16 v[{b}:{b+1}], v{a} offset:{o}\nds_read_b64_tr_b16 v[{b+2}:{b+3}], v{a} offset:{o + second}')
    for ks in range(5): rd(ks)
    for ks in range(32):
        if ks + 5 < 32: rd(ks + 5)
        b = 20 + 4 * (ks % 6)
        for j in range(4): e(f'v_dot2c_f32_bf16 v{18 + (j & 1)}, {ONES}, v{b + j}')
    e('s_nop 2\nv_add_f32 v18, v18, v19\nv_mov_b32 v19, v18\ns_nop 1\nv_permlane32_swap_b32 v18, v19\nv_add_f32 v18, v18, v19')
    e(f'v_and_b32 v9, 31, v9\ns_lshl_b32 s50, s50, 7\ns_add_u32 s50, s50, {CS}\nv_lshl_add_u32 v9, v9, 2, s50\nds_write_b32 v9, v18\ns_waitcnt lgkmcnt(0)')

def stats_finish(vS, vQ, vA, vB):
    return [f'v_mul_f32 v{vS}, {fl(1/512)}, v{vS}', f'v_mul_f32 v{vQ}, {fl(1/512)}, v{vQ}',
            f'v_fma_f32 v{vQ}, -v{vS}, v{vS}, v{vQ}', f'v_max_f32 v{vQ}, 0, v{vQ}', f'v_add_f32 v{vQ}, {fl(1e-5)}, v{vQ}',
            f'v_rsq_f32 v{vA}, v{vQ}', 's_nop 0', f'v_mul_f32 v{vB}, v{vS}, v{vA}', f'v_sub_f32 v{vB}, 0, v{vB}']
def stats_load(sbase_const_reg, t0, vOff4):
    for ft in range(16): e(f'buffer_load_dword v{t0 + ft}, v{vOff4}, {SWS}, {sbase_const_reg} offen offset:{ft * 256}')
def stats_reduce(t0, vS, vQ):
    o = []
    for s in (8, 4, 2, 1):
        for k in range(s): o.append(f'v_add_f32 v{t0 + k}, v{t0 + k}, v{t0 + k + s}')
    o += [f'v_mov_b32 v{vS}, v{t0}', f'v_mov_b32 v{vQ}, v{t0}', 's_nop 1', f'v_permlane32_swap_b32 v{vS}, v{vQ}']
    return o

def cvt_inplace(acc):
    o = []
    for half in (0, 8):
        for k in range(4): o.append(f'v_cvt_pk_bf16_f32 v{acc + half + k}, v{acc + half + 2 * k}, v{acc + half + 2 * k + 1}')
    return o

def qkv_compute(first):
    A = 0; ACC = 128; BR = 176; vB = 208; vL = 212; vA_, vB_ = 213, 214; T = 216
    lane(vL)
    e(f's_lshr_b32 s44, {sR}, 4\ns_lshl_b32 s44, s44, 2\ns_lshl_b32 s45, {sG}, 3\ns_add_u32 s44, s44, s45\ns_add_u32 s44, s44, {sW}')
    if first:
        e(f'v_lshrrev_b32 v{T}, 3, v{vL}\nv_and_b32 v{T+1}, 7, v{vL}\nv_lshlrev_b32 v{T+2}, 10, v{T}\nv_lshl_add_u32 v{T+2}, v{T+1}, 4, v{T+2}')
        e('s_lshl_b32 s45, s44, 15\ns_add_u32 s46, s45, 8192\ns_add_u32 s47, s45, 16384\ns_add_u32 s48, s45, 24576')
        for q in range(8):
            for i in range(4): e(f'buffer_load_dwordx4 {vr(A + 16 * q + 4 * i)}, v{T+2}, {SX}, s{45 + i} offen offset:{128 * q}')
        e(f's_lshl_b32 s49, {sW}, 13\ns_add_u32 s49, s49, {XST}')
        e(f'v_lshrrev_b32 v{T+3}, 4, v{vL}\nv_xor_b32 v{T+3}, v{T+3}, v{T+1}\nv_lshlrev_b32 v{T+4}, 7, v{T}\nv_add_u32 v{T+4}, s49, v{T+4}')
        e(f'v_lshl_add_u32 v{T+5}, v{T+3}, 4, v{T+4}\nv_xor_b32 v{T+3}, 4, v{T+3}\nv_lshl_add_u32 v{T+6}, v{T+3}, 4, v{T+4}')
        e(f'v_and_b32 v{T}, 31, v{vL}\nv_lshrrev_b32 v{T+1}, 5, v{vL}\nv_bfe_u32 v{T+3}, v{vL}, 1, 3\nv_xor_b32 v{T+1}, v{T+1}, v{T+3}')
        e(f'v_lshlrev_b32 v{T}, 7, v{T}\nv_add_u32 v{T}, s49, v{T}')
        for s in range(4): e(f'v_xor_b32 v{T+3}, {2 * s}, v{T+1}\nv_lshl_add_u32 v{T+7+s}, v{T+3}, 4, v{T}')
        for k in range(4): e(f'v_mov_b32 v{T+12+k}, 0')
        def dots(q):
            for r in range(16):
                e(f'v_dot2c_f32_bf16 v{T+12+(r&1)}, {ONES}, v{A + 16*q + r}\nv_dot2c_f32_bf16 v{T+14+(r&1)}, v{A + 16*q + r}, v{A + 16*q + r}')
        for q in range(8):
            for i in range(4): e(f'ds_write_b128 v{T+5+(i&1)}, {vr(A + 16*q + 4*i)} offset:{1024*i + 4096*(q&1)}')
            for s in range(4): e(f'ds_read_b128 {vr(A + 16*q + 4*s)}, v{T+7+s} offset:{4096*(q&1)}')
            if q: dots(q - 1)
        dots(7)
        e(f's_nop 2\nv_add_f32 v{T+12}, v{T+12}, v{T+13}\nv_add_f32 v{T+14}, v{T+14}, v{T+15}\ns_nop 1\nv_permlane32_swap_b32 v{T+12}, v{T+14}')
        e(f'v_add_f32 v{T+12}, v{T+12}, v{T+14}\nv_mov_b32 v{T+14}, v{T+12}\ns_nop 1\nv_permlane32_swap_b32 v{T+12}, v{T+14}')
        for x in stats_finish(T + 12, T + 14, vA_, vB_): e(x)
        pre = []
    else:
        e(f'v_lshlrev_b32 v{T+16}, 2, v{vL}\nv_lshlrev_b32 v{T+17}, 4, v{vL}')
        e(f's_lshl_b32 s45, s44, 12\ns_add_u32 s45, s45, {ST2}\ns_lshl_b32 s46, s44, 15\ns_add_u32 s46, s46, {X2B}')
        barrier()
        stamp('qkv_start', 0)
        stats_load('s45', T, T + 16)
        for ks in range(32):
            e(f'buffer_load_dwordx4 {vr(A + 4 * ks)}, v{T+17}, {SWS}, s46 offen offset:{1024 * (ks & 3)}')
            if (ks & 3) == 3 and ks < 31: e('s_add_u32 s46, s46, 4096')
        pre = stats_reduce(T, T + 16, T + 17) + stats_finish(T + 16, T + 17, vA_, vB_)
    tr_lane_parts(vL, T + 20)
    r_, c_, h_ = T + 20, T + 21, T + 22
    if first: e(f'v_lshl_add_u32 v{vB}, v{h_}, 3, v{r_}\nv_add_u32 v{vB+1}, 4, v{vB}')
    else: e(f'v_lshl_add_u32 v{vB}, v{h_}, 2, v{r_}\nv_add_u32 v{vB+1}, 8, v{vB}')
    for k in range(2): e(f'v_mul_u32_u24 v{vB+k}, 192, v{vB+k}\nv_add_u32 v{vB+k}, v{vB+k}, v{c_}\nv_add_u32 v{vB+2+k}, 49152, v{vB+k}')
    barrier()
    stamp('qkv_bl', 0)
    nfr = [0]
    def rd(ks, j):
        b = BR + 4 * (nfr[0] % 8); nfr[0] += 1
        a = vB + 2 * (ks // 16); o = (ks % 16) * 3072 + 64 * j
        return b, f'ds_read_b64_tr_b16 v[{b}:{b+1}], v{a} offset:{o}\nds_read_b64_tr_b16 v[{b+2}:{b+3}], v{a+1} offset:{o}'
    seq = [(ks, j) for ks in range(32) for j in range(2)] + [(ks, 2) for ks in range(32)]
    regs = {}
    AH = 6
    def issue(n):
        if n < len(seq):
            b, t = rd(*seq[n]); regs[seq[n]] = b; return [t]
        return []
    for n in range(AH):
        for x in issue(n): e(x)
    slots = []
    for n, (ks, j) in enumerate(seq):
        b = None
        def mf(ks=ks, j=j):
            b = regs[(ks, j)]; acc = ACC + 16 * j; c = vr(acc, 16) if ks else '0'
            if j < 2: e(f'v_mfma_f32_32x32x16_bf16 {vr(acc,16)}, {vr(b)}, {vr(A + 4*ks)}, {c}')
            else: e(f'v_mfma_f32_32x32x16_bf16 {vr(acc,16)}, {vr(A + 4*ks)}, {vr(b)}, {c}')
        def nx(n=n):
            for x in issue(n + AH): e(x)
        slots.append([mf, nx])
    merge(slots[:64], pre, start=8, per=2)
    barrier()
    e(f's_and_b32 s50, {sR}, 15\ns_lshr_b32 s51, s50, 1\ns_and_b32 s50, s50, 1')
    e(f's_lshl_b32 s45, s44, 10\ns_add_u32 s45, s45, {sQ}\ns_lshl_b32 s52, s51, 18\ns_add_u32 s45, s45, s52')
    e(f's_add_u32 s46, s45, {4 * MB}\ns_lshl_b32 s52, s50, 17\ns_add_u32 s46, s46, s52')
    e(f's_lshl_b32 s52, s50, 21\ns_add_u32 s45, s45, s52')
    e(f's_cmp_eq_u32 s50, 0\ns_cselect_b32 s47, {fl(0.25 * LOG2E)}, 1.0\ns_cselect_b32 s48, 0, 12')
    fill = []
    aq, bq, vo, vcs, vst = T + 16, T + 17, T + 18, T + 19, T + 23
    fill += [f'v_mul_f32 v{aq}, s47, v{vA_}', f'v_mul_f32 v{bq}, s47, v{vB_}']
    fill += [f'v_lshrrev_b32 v{vo}, 1, v{vL}', f'v_xor_b32 v{vo}, v{vo}, v{vL}', f'v_bfe_i32 v{vo}, v{vo}, 2, 1', f'v_and_b32 v{vo}, s48, v{vo}',
             f'v_xor_b32 v{vo}, v{vo}, v{vL}', f'v_lshlrev_b32 v{vo}, 4, v{vo}']
    fill += [f'v_lshlrev_b32 v{vcs}, 4, v{h_}', f'v_add_u32 v{vcs}, {CS}, v{vcs}']
    fill += [f'v_cmp_gt_u32 vcc, 32, v{vL}', f's_lshl_b32 s52, {sW}, 8', f's_add_u32 s52, s52, {VST}', f'v_cndmask_b32 v{vst}, v{vB_}, v{vA_}, vcc',
             f'v_lshl_add_u32 v{vst+1}, v{vL}, 2, s52', f'ds_write_b32 v{vst+1}, v{vst}', f'v_lshl_add_u32 v{vst+1}, v{h_}, 4, s52']
    for j in range(2):
        acc = ACC + 16 * j
        for q in range(4): fill.append(f'ds_read_b128 {vr(T + 4*q)}, v{vcs} offset:{(32*j + 8*q) * 4}')
        for r in range(16): fill += [f'v_mul_f32 v{T + r}, v{bq}, v{T + r}', f'v_fma_f32 v{acc + r}, v{aq}, v{acc + r}, v{T + r}']
        fill += cvt_inplace(acc)
        fill += [f'buffer_store_dwordx4 {vr(acc)}, v{vo}, {SWS}, s45 offen sc1', 's_add_u32 s45, s45, 65536',
                 f'buffer_store_dwordx4 {vr(acc + 8)}, v{vo}, {SWS}, s45 offen sc1', 's_add_u32 s45, s45, 65536']
    U = ACC
    fill += [f'v_and_b32 v{vcs}, 31, v{vL}', f'v_lshlrev_b32 v{vcs}, 2, v{vcs}', f'v_add_u32 v{vcs}, {CS + 256}, v{vcs}', f'ds_read_b32 v{vcs}, v{vcs}']
    for q in range(4): fill.append(f'ds_read_b128 {vr(T + 4*q)}, v{vst+1} offset:{32*q}')
    for q in range(4): fill.append(f'ds_read_b128 {vr(U + 4*q)}, v{vst+1} offset:{128 + 32*q}')
    for r in range(16): fill.append(f'v_mul_f32 v{U + r}, v{vcs}, v{U + r}')
    fill += [f'v_bfe_u32 v{vo}, v{vL}, 4, 1', f'v_lshlrev_b32 v{vo}, 16, v{vo}', f'v_lshl_add_u32 v{vo}, v{h_}, 8, v{vo}',
             f'v_and_b32 v{vcs}, 15, v{vL}', f'v_lshl_add_u32 v{vo}, v{vcs}, 4, v{vo}']
    merge(slots[64:], fill, start=3, per=6)
    acc = ACC + 32
    e('s_nop 11')
    for r in range(16): e(f'v_fma_f32 v{acc + r}, v{T + r}, v{acc + r}, v{U + r}')
    for x in cvt_inplace(acc): e(x)
    e(f'buffer_store_dwordx4 {vr(acc)}, v{vo}, {SWS}, s46 offen sc1\nbuffer_store_dwordx4 {vr(acc + 8)}, v{vo}, {SWS}, s46 offen offset:512 sc1')
    stamp('qkv_st', 0)
    e('s_waitcnt vmcnt(0)')
    barrier()

def qkv_phase(first):
    LH = g.lab('QH'); LD = g.lab('QD'); LE = g.lab('QE')
    g.reset_track()
    e(f's_cmp_ge_u32 {sW}, 4\ns_cbranch_scc1 {LH}')
    qkv_compute(first)
    if first: read_bcast()
    e(f's_branch {LE}')
    e(f'{LH}:'); g.reset_track()
    e(f's_cmp_ge_u32 {sW}, 5\ns_cbranch_scc1 {LD}')
    if first: register_start()
    else:
        arrive_local(); poll_local(True); barrier()
    barrier()
    if first: register_resolve()
    barrier()
    barrier()
    arrive_local()
    e(f's_branch {LE}')
    e(f'{LD}:'); g.reset_track()
    if first: dma_qkvB()
    else: barrier()
    e('s_waitcnt vmcnt(0)')
    barrier()
    colsum('qkv')
    barrier()
    barrier()
    if first: read_bcast()
    e(f'{LE}:'); g.reset_track()

def attention():
    S = [0, 16]; O = 32; NM = 48; Q = 64; KF = [68, 72]; V0 = [76, 80]; V1 = [84, 88]
    vK, vV, vI, vD, vL, vW1, vWO, vP = 92, 93, 94, 95, 96, 97, 98, 99
    START = g.lab('ATT'); SLOW = g.lab('ASLOW'); DONE = g.lab('ADONE')
    e(f's_mov_b32 {sRETRY}, 0')
    for r in range(16): e(f'v_mov_b32 v{NM + r}, 0')
    e(f'{START}:'); g.reset_track()
    lane(vL)
    e(f'v_mov_b32 v0, {ONES}\nv_mov_b32 v1, {ONES}\nv_mov_b32 v2, {ONES}\nv_mov_b32 v3, {ONES}')
    e(f'v_lshrrev_b32 v4, 4, v{vL}\ns_and_b32 s44, {sW}, 1\ns_lshl_b32 s44, s44, 2\nv_add_u32 v4, s44, v4\nv_mul_u32_u24 v4, {STG}, v4')
    e(f'v_and_b32 v5, 15, v{vL}\nv_mul_u32_u24 v5, 528, v5\nv_add_u32 v4, v4, v5\nds_write_b128 v4, v[0:3] offset:{KV0 + 8192 + 512}')
    e(f'v_mov_b32 v4, {BCAST + 4}\nv_mov_b32 v5, 0\nds_write_b32 v4, v5')
    e(f'v_lshlrev_b32 v{vD}, 4, v{vL}\nv_add_u32 v{vK}, {KV0}, v{vD}')
    e(f'v_and_b32 v4, 31, v{vL}\nv_lshrrev_b32 v5, 5, v{vL}\nv_lshlrev_b32 v5, 8, v5\nv_lshl_add_u32 v5, v4, 4, v5\nv_cmp_gt_u32 vcc, 16, v4\nv_mov_b32 v6, 512\ns_nop 0')
    e(f'v_cndmask_b32 v{vV}, v6, v5, vcc\nv_add_u32 v{vV}, {KV0 + 8192}, v{vV}\nv_mov_b32 v{vI}, 0xdddddddd')
    addr_w1(vW1); addr_128(vWO)
    for r in range(16): e(f'v_mov_b32 v{O + r}, 0')
    e(f's_lshl_b32 s44, {sR}, 16\ns_add_u32 s44, s44, {sQ}')
    e(f's_lshl_b32 s45, {sG}, 3\ns_add_u32 s45, s45, {sW}\ns_lshl_b32 s46, s45, 10\ns_add_u32 s46, s46, s44')
    e(f's_lshl_b32 s47, {sW}, 10\ns_add_u32 s48, s44, s47\ns_add_u32 s49, s48, {4 * MB}\ns_add_u32 s48, s48, {2 * MB}')
    e(f's_add_u32 s52, s47, {KV0}\ns_mul_i32 s53, {sW}, 1056\ns_add_u32 s53, s53, {KV0 + 8192}')
    e('s_waitcnt lgkmcnt(0)')
    NG = g.lab('ANG')
    e(f's_cmp_lg_u32 {sW}, 4\ns_cbranch_scc1 {NG}\ns_cmp_lg_u32 {sRETRY}, 0\ns_cbranch_scc1 {NG}')
    stamp('qkv_be', 1)
    global_barrier()
    stamp('gbar', 1)
    e(f'{NG}:'); g.reset_track()
    barrier()
    stamp('att_start', 0)
    e(f'buffer_load_dwordx4 {vr(Q)}, v{vD}, {SWS}, s46 offen')
    for s in range(8):
        e(f's_mov_b32 m0, s52\ns_add_u32 s52, s52, {STG}')
        e(f'buffer_load_dwordx4 v{vD}, {SWS}, s48 offen lds')
        e(f's_mov_b32 exec_hi, 0\ns_mov_b32 m0, s53\ns_add_u32 s48, s48, 8192')
        e(f'buffer_load_dwordx4 v{vD}, {SWS}, s49 offen lds')
        e(f's_add_u32 m0, s53, 16\ns_add_u32 s53, s53, {STG}')
        e(f'buffer_load_dwordx4 v{vD}, {SWS}, s49 offen offset:512 lds')
        e('s_mov_b32 exec_hi, -1\ns_add_u32 s49, s49, 8192')
    nkv = g.nvm()
    extra = [0]
    base = {'K': 0, 'V': 0}
    def landed(s):
        g.force_wait(f'vmcnt({3 * (7 - s) + extra[0]})'); barrier()
    def kread(t):
        if t > 63: return []
        off = (t // 8) * STG + (t % 8) * 1024 - base['K']
        return [f'ds_read_b128 {vr(KF[t & 1])}, v{vK} offset:{off}']
    def vread(t, half):
        if t > 63: return []
        off = (t // 8) * STG + (2 * (t % 8) + half) * 528 - base['V']
        return [f'ds_read_b128 {vr((V0, V1)[half][t & 1])}, v{vV} offset:{off}']
    def qk(t): return f'v_mfma_f32_32x32x16_bf16 {vr(S[t & 1], 16)}, {vr(KF[t & 1])}, {vr(Q)}, {vr(NM, 16)}'
    def pv(t, half): return f'v_smfmac_f32_32x32x32_bf16 {vr(O, 16)}, {vr((V0, V1)[half][t & 1])}, {vr(S[t & 1] + 8 * half, 8)}, v{vI}'
    s_fb('s54'); e(f's_lshl_b32 s54, s54, 8\ns_and_b32 s55, {sR}, 7\ns_lshl_b32 s55, s55, 7')
    def w1_pref(n0, cnt):
        for k in range(cnt):
            n = n0 + 8 * k
            e(f's_add_u32 s50, {sW}, {n}\ns_lshl_b32 s51, s50, 10\ns_add_u32 m0, s51, {W1B}\ns_mul_i32 s50, s50, 14336\ns_add_u32 s50, s50, s54')
            e(f'buffer_load_dwordx4 v{vW1}, {SW1}, s50 offen lds'); extra[0] += 1
    def side(s):
        if s == 4:
            e(f's_lshl_b32 s50, {sW}, 13\ns_add_u32 s50, s50, s55\ns_lshl_b32 s51, {sW}, 10')
            for k in range(8):
                e(f's_add_u32 m0, s51, {8192 * k}\ns_nop 0\nbuffer_load_dwordx4 v{vWO}, {SWO}, s50 offen lds\ns_add_u32 s50, s50, 65536'); extra[0] += 1
        if s == 5: w1_pref(50, 1)
        if s == 6: w1_pref(58, 2)
        if s == 7:
            w1_pref(74, 2)
            e(f's_lshr_b32 s50, {sR}, 3\ns_mul_i32 s50, s50, 448\ns_lshl_b32 s51, {sW}, 6\ns_add_u32 s50, s50, s51\ns_lshl_b32 s50, s50, 10\ns_add_u32 s50, s50, s55')
            e(f'v_lshlrev_b32 v{vP}, 10, v{vL}\nbuffer_load_dword v{vP+1}, v{vP}, {SW2}, s50 offen'); extra[0] += 1
        if s == 8: w1_pref(90, 2)
    landed(0)
    for x in kread(0) + vread(0, 0) + vread(0, 1) + kread(1) + vread(1, 0): e(x)
    e(qk(0))
    for x in kread(2): e(x)
    e('s_nop 10')
    for t in range(64):
        s0 = S[t & 1]
        ex = [f'v_exp_f32 v{s0 + r}, v{s0 + r}' for r in range(16)]
        e(ex[0]); e(ex[1])
        if t: e(pv(t - 1, 1))
        for x in vread(t + 1, 1): e(x)
        if t % 8 == 4:
            s = t // 8 + 1
            if s <= 7: landed(s)
            else: barrier()
            side(s)
        g.wait_for(vr(KF[(t + 1) & 1]), vr(V0[t & 1]))
        for r in range(2, 5): e(ex[r])
        if t < 63: e(qk(t + 1))
        if t % 8 == 5 and (t // 8) in (2, 5):
            e(f'v_add_u32 v{vK}, {3 * STG}, v{vK}'); base['K'] += 3 * STG
        for x in kread(t + 3): e(x)
        for r in range(5, 10): e(ex[r])
        e(pv(t, 0))
        if t % 8 == 6 and (t // 8) in (2, 5):
            e(f'v_add_u32 v{vV}, {3 * STG}, v{vV}'); base['V'] += 3 * STG
        for x in vread(t + 2, 0): e(x)
        g.wait_for(vr(V1[t & 1]))
        for r in range(10, 16): e(ex[r])
    e('s_nop 1')
    e(pv(63, 1))
    stamp('att_loop', 0)
    e(f's_lshl_b32 s46, s45, 15\ns_lshl_b32 s47, {sR}, 10\ns_add_u32 s46, s46, s47\ns_add_u32 s46, s46, {sO}')
    e('s_nop 9')
    e(f'v_rcp_f32 v0, v{O + 8}')
    e(f'v_mov_b32 v1, {fl(2.0**-30)}\nv_mov_b32 v2, {fl(2.0**64)}')
    e(f'v_cmp_nle_f32 s[50:51], v1, v{O + 8}\nv_cmp_nge_f32 vcc, v2, v{O + 8}\ns_nop 0\ns_or_b64 s[50:51], s[50:51], vcc')
    e('v_mov_b32 v3, 0x207')
    for r in range(8):
        e(f'v_cmp_class_f32 vcc, v{O + r}, v3\nv_mul_f32 v{O + r}, v0, v{O + r}\ns_or_b64 s[50:51], s[50:51], vcc')
    for k in range(4): e(f'v_cvt_pk_bf16_f32 v{O + k}, v{O + 2*k}, v{O + 2*k + 1}')
    store_act([f'buffer_store_dwordx4 {vr(O)}, v{vD}, {SWS}, s46 offen'])
    NB = g.lab('ANB')
    if FORCE_SLOW: e('s_mov_b64 s[50:51], -1')
    e(f's_cmp_eq_u64 s[50:51], 0\ns_cbranch_scc1 {NB}')
    e(f'v_mov_b32 v4, {BCAST + 4}\nv_mov_b32 v5, 1\nds_write_b32 v4, v5')
    e(f'{NB}:')
    e('s_waitcnt vmcnt(0) lgkmcnt(0)')
    barrier()
    e(f'v_mov_b32 v4, {BCAST + 4}\nds_read_b32 v5, v4\ns_waitcnt lgkmcnt(0)\nv_readfirstlane_b32 s50, v5\ns_nop 0')
    e(f's_andn2_b32 s50, s50, {sRETRY}\ns_cmp_eq_u32 s50, 0\ns_cbranch_scc1 {DONE}')
    e(f's_mov_b32 {sRETRY}, 1')
    barrier()
    e(f's_add_u32 s48, s44, {2 * MB}\ns_lshl_b32 s47, {sW}, 10\ns_add_u32 s48, s48, s47')
    for k in range(8):
        e(f's_add_u32 m0, s47, {8192 * k}\ns_nop 0\nbuffer_load_dwordx4 v{vD}, {SWS}, s48 offen lds\ns_add_u32 s48, s48, 8192')
    e('s_waitcnt vmcnt(0)')
    barrier()
    e(f'v_mov_b32 v{vK}, v{vD}\nv_mov_b32 v{NM}, 0xff800000\ns_mov_b32 s50, 0')
    L = g.lab('AMX')
    e(f'{L}:')
    e(f'ds_read_b128 {vr(KF[0])}, v{vK}\nv_add_u32 v{vK}, 1024, v{vK}\ns_waitcnt lgkmcnt(0)')
    e(f'v_mfma_f32_32x32x16_bf16 {vr(S[0], 16)}, {vr(KF[0])}, {vr(Q)}, 0\ns_nop 12')
    for r in range(0, 16, 2): e(f'v_max3_f32 v{NM}, v{NM}, v{r}, v{r + 1}')
    e(f's_add_u32 s50, s50, 1\ns_cmp_lt_u32 s50, 64\ns_cbranch_scc1 {L}')
    e(f'v_mov_b32 v{NM+1}, v{NM}\ns_nop 1\nv_permlane32_swap_b32 v{NM}, v{NM+1}\nv_max_f32 v{NM}, v{NM}, v{NM+1}\nv_sub_f32 v{NM}, 0, v{NM}')
    for r in range(1, 16): e(f'v_mov_b32 v{NM + r}, v{NM}')
    barrier()
    e(f's_branch {START}')
    e(f'{DONE}:'); g.reset_track()

def proj_compute(kind):
    A = 0; ACC = 128; BR = 176; vB = 208; vL = 212; T = 216
    wo = kind == 'wo'
    NS = 16 if wo else 56
    lane(vL)
    e(f's_lshr_b32 s44, {sR}, 3\ns_lshl_b32 s44, s44, 1\ns_lshl_b32 s45, {sG}, 3\ns_add_u32 s44, s44, s45\ns_and_b32 s45, {sW}, 1\ns_add_u32 s44, s44, s45')
    e(f's_lshr_b32 s45, {sW}, 1\ns_and_b32 s47, {sR}, 7\ns_lshl_b32 s47, s47, 1\ns_add_u32 s47, s47, s45')
    e(f'v_lshlrev_b32 v{T}, 4, v{vL}')
    if wo: e(f's_lshl_b32 s46, s44, 15\ns_lshl_b32 s48, s45, 14\ns_add_u32 s46, s46, s48\ns_add_u32 s46, s46, {sO}')
    else: e(f's_mul_i32 s46, s44, {112 * 1024}\ns_mul_i32 s48, s45, {56 * 1024}\ns_add_u32 s46, s46, s48\ns_add_u32 s46, s46, {sH}')
    if wo:
        N1 = g.lab('WOR')
        e(f's_cmp_lg_u32 {sLAY}, 0\ns_cbranch_scc1 {N1}')
        e(f'v_and_b32 v{T+1}, 31, v{vL}\nv_lshrrev_b32 v{T+2}, 5, v{vL}\nv_lshlrev_b32 v{T+1}, 10, v{T+1}\nv_lshl_add_u32 v{T+1}, v{T+2}, 3, v{T+1}')
        e('s_lshl_b32 s48, s44, 15\ns_lshl_b32 s49, s47, 6\ns_add_u32 s48, s48, s49')
        for q in range(4): e(f'buffer_load_dwordx2 v[{RES + 2*q}:{RES + 2*q + 1}], v{T+1}, {SX}, s48 offen offset:{16 * q}')
        e('s_waitcnt vmcnt(0)')
        e(f'{N1}:')
    for k in range(8): e(f'v_lshlrev_b32 v{ACC + 2*k}, 16, v{RES + k}\nv_and_b32 v{ACC + 2*k + 1}, 0xffff0000, v{RES + k}')
    tr_lane_parts(vL, T + 4)
    r_, c_, h_ = T + 4, T + 5, T + 6
    e(f'v_lshl_add_u32 v{T+7}, v{h_}, 2, v{r_}\nv_lshlrev_b32 v{T+7}, 7, v{T+7}\nv_add_u32 v{T+7}, v{T+7}, v{c_}')
    e(f's_mul_i32 s48, s45, {32768 if wo else W2H}\nv_add_u32 v{T+7}, s48, v{T+7}')
    e(f'v_lshrrev_b32 v{T+8}, 1, v{r_}\nv_xor_b32 v{T+8}, s45, v{T+8}\nv_lshl_add_u32 v{vB}, v{T+8}, 6, v{T+7}\nv_xor_b32 v{vB+1}, 64, v{vB}')
    if not wo: e(f'v_add_u32 v{vB+2}, 32768, v{vB}\nv_add_u32 v{vB+3}, 32768, v{vB+1}')
    barrier()
    stamp(kind + '_start', 0)
    nl = [0]
    def aload():
        ks = nl[0]
        if ks >= NS: return
        nl[0] += 1
        e(f'buffer_load_dwordx4 {vr(A + 4 * (ks % 32))}, v{T}, {SWS}, s46 offen offset:{1024 * (ks & 3)}')
        if (ks & 3) == 3: e('s_add_u32 s46, s46, 4096')
    for _ in range(min(NS, 32)): aload()
    if not wo: barrier()
    nfr = [0]; regs = {}
    def issue(n):
        ks, j = divmod(n, 2)
        if ks >= NS: return
        if not wo and j == 0 and ks in (18, W2RES):
            e('s_waitcnt lgkmcnt(0)'); barrier()
        b = BR + 4 * (nfr[0] % 8); nfr[0] += 1; regs[n] = b
        slot = ks if ks < W2RES else ks - W2RES
        a = vB + j + 2 * (slot // 16); o = (slot % 16) * 2048
        if slot >= 32: a = vB + j + 2; o = (slot - 16) * 2048
        e(f'ds_read_b64_tr_b16 v[{b}:{b+1}], v{a} offset:{o}\nds_read_b64_tr_b16 v[{b+2}:{b+3}], v{a} offset:{o + 1024}')
    AH = 6
    for n in range(AH): issue(n)
    for n in range(2 * NS):
        ks, j = divmod(n, 2)
        acc = ACC + 16 * j
        c = '0' if (ks == 0 and j == 1) else vr(acc, 16)
        e(f'v_mfma_f32_32x32x16_bf16 {vr(acc,16)}, {vr(regs[n])}, {vr(A + 4 * (ks % 32))}, {c}')
        issue(n + AH)
        if j == 1: aload()
    stamp(kind + '_loop', 0)
    RED = RED1 if wo else RED2
    e(f's_lshl_b32 s48, {sW}, 12\ns_add_u32 s48, s48, {RED}\nv_add_u32 v{T+1}, s48, v{T}\ns_xor_b32 s48, s48, 8192\nv_add_u32 v{T+2}, s48, v{T}')
    e('s_nop 6')
    for q in range(4): e(f'ds_write_b128 v{T+1}, {vr(ACC + 16 + 4*q)} offset:{1024 * q}')
    e('s_waitcnt lgkmcnt(0)')
    barrier()
    for q in range(4): e(f'ds_read_b128 {vr(ACC + 16 + 4*q)}, v{T+2} offset:{1024 * q}')
    for r in range(16): e(f'v_add_f32 v{ACC + r}, v{ACC + r}, v{ACC + 16 + r}')
    for k in range(8): e(f'v_cvt_pk_bf16_f32 v{RES + k}, v{ACC + 2*k}, v{ACC + 2*k + 1}')
    def act_out():
        e(f's_lshl_b32 s46, s44, 15\ns_lshl_b32 s48, s47, 11\ns_add_u32 s46, s46, s48\ns_add_u32 s46, s46, {sX1 if wo else X2B}')
        e(f's_lshl_b32 s49, s44, 12\ns_lshl_b32 s48, s47, 8\ns_add_u32 s49, s49, s48\ns_add_u32 s49, s49, {sST1 if wo else ST2}')
        store_act([f'buffer_store_dwordx4 {vr(RES)}, v{T}, {SWS}, s46 offen', f'buffer_store_dwordx4 {vr(RES + 4)}, v{T}, {SWS}, s46 offen offset:1024'])
        for k in range(4): e(f'v_mov_b32 v{T+8+k}, 0')
        for k in range(8): e(f'v_dot2c_f32_bf16 v{T+8+(k&1)}, {ONES}, v{RES + k}\nv_dot2c_f32_bf16 v{T+10+(k&1)}, v{RES + k}, v{RES + k}')
        e(f'v_lshlrev_b32 v{T+1}, 2, v{vL}\ns_nop 1\nv_add_f32 v{T+8}, v{T+8}, v{T+9}\nv_add_f32 v{T+10}, v{T+10}, v{T+11}\ns_nop 1')
        e(f'v_permlane32_swap_b32 v{T+8}, v{T+10}\nv_add_f32 v{T+8}, v{T+8}, v{T+10}')
        store_act([f'buffer_store_dword v{T+8}, v{T+1}, {SWS}, s49 offen'])
    if wo: act_out()
    else:
        F = g.lab('W2F'); D = g.lab('W2D')
        e(f's_cmp_lg_u32 {sLAY}, 0\ns_cbranch_scc1 {F}')
        act_out()
        e(f's_branch {D}')
        e(f'{F}:')
        e(f'v_and_b32 v{T+1}, 31, v{vL}\nv_lshlrev_b32 v{T+1}, 10, v{T+1}\nv_lshl_add_u32 v{T+1}, v{h_}, 4, v{T+1}')
        e('s_lshl_b32 s46, s44, 15\ns_lshl_b32 s48, s47, 6\ns_add_u32 s46, s46, s48')
        e(f'v_permlane32_swap_b32 v{RES}, v{RES+2}\nv_permlane32_swap_b32 v{RES+1}, v{RES+3}\nv_permlane32_swap_b32 v{RES+4}, v{RES+6}\nv_permlane32_swap_b32 v{RES+5}, v{RES+7}')
        e(f'buffer_store_dwordx4 {vr(RES)}, v{T+1}, {SOUT}, s46 offen\nbuffer_store_dwordx4 {vr(RES+4)}, v{T+1}, {SOUT}, s46 offen offset:32')
        e(f'{D}:')
    stamp(kind + '_st', 0)
    e('s_waitcnt vmcnt(0)')
    barrier()

def wo_phase():
    LH = g.lab('OH'); LD = g.lab('OD'); LE = g.lab('OE')
    e(f's_cmp_ge_u32 {sW}, 4\ns_cbranch_scc1 {LH}')
    proj_compute('wo')
    e(f's_branch {LE}')
    e(f'{LH}:'); g.reset_track()
    e(f's_cmp_ge_u32 {sW}, 5\ns_cbranch_scc1 {LD}')
    arrive_local(); poll_local(False)
    barrier(); barrier(); barrier()
    e(f's_branch {LE}')
    e(f'{LD}:'); g.reset_track()
    dma_w1(106, 128)
    barrier()
    barrier()
    dma_w1(0, 34)
    barrier()
    dma_w1(34, 50)
    e(f'{LE}:'); g.reset_track()

def w2_phase():
    LH = g.lab('TH'); LD = g.lab('TD'); LE = g.lab('TE'); N = g.lab('TN')
    e(f's_cmp_ge_u32 {sW}, 4\ns_cbranch_scc1 {LH}')
    proj_compute('w2')
    e(f's_branch {LE}')
    e(f'{LH}:'); g.reset_track()
    e(f's_cmp_ge_u32 {sW}, 5\ns_cbranch_scc1 {LD}')
    arrive_local(); poll_local(True)
    for _ in range(6): barrier()
    e(f's_branch {LE}')
    e(f'{LD}:'); g.reset_track()
    barrier()
    e('s_waitcnt vmcnt(26)')
    barrier()
    e('s_waitcnt vmcnt(0)')
    barrier()
    dma_w2(0, 76, 112, 0); dma_w2(1, 76, 112, 0)
    e('s_waitcnt vmcnt(0)')
    barrier()
    barrier()
    e(f's_cmp_lg_u32 {sLAY}, 0\ns_cbranch_scc1 {N}')
    dma_qkvB()
    e(f'{N}:')
    barrier()
    e(f'{LE}:'); g.reset_track()

def w1_compute():
    A = 0; ACC = 128; BR = 192; vB = 216; vL = 224; vA_, vB_, vo, vcs = 225, 226, 227, 228; CQ = 232; T = 240
    IDLE = g.lab('W1I'); END = g.lab('W1E')
    lane(vL)
    e(f's_and_b32 s47, {sR}, 15\ns_cmp_ge_u32 s47, 14\ns_cbranch_scc1 {IDLE}')
    e(f's_lshr_b32 s44, {sR}, 4\ns_lshl_b32 s44, s44, 2\ns_lshl_b32 s45, {sG}, 3\ns_add_u32 s44, s44, s45\ns_add_u32 s44, s44, {sW}')
    e(f'v_lshlrev_b32 v{vcs}, 2, v{vL}\nv_lshlrev_b32 v{vo}, 4, v{vL}')
    e(f's_lshl_b32 s45, s44, 12\ns_add_u32 s45, s45, {sST1}\ns_lshl_b32 s46, s44, 15\ns_add_u32 s46, s46, {sX1}')
    tr_lane_parts(vL, T)
    r_, c_, h_ = T, T + 1, T + 2
    e(f'v_lshl_add_u32 v{T+3}, v{h_}, 2, v{r_}\nv_lshlrev_b32 v{T+3}, 8, v{T+3}\nv_add3_u32 v{T+3}, v{T+3}, v{c_}, 0\nv_add_u32 v{T+3}, {W1B}, v{T+3}')
    for ft in range(4): e(f'v_xor_b32 v{T+4}, {ft}, v{r_}\nv_lshl_add_u32 v{vB+ft}, v{T+4}, 6, v{T+3}\nv_add_u32 v{vB+4+ft}, 65536, v{vB+ft}')
    e(f'v_lshlrev_b32 v229, 4, v{h_}\nv_add_u32 v229, {CS}, v229')
    barrier()
    stamp('w1_start', 0)
    ST = ACC + 32
    stats_load('s45', ST, vcs)
    for ks in range(32):
        e(f'buffer_load_dwordx4 {vr(A + 4 * ks)}, v{vo}, {SWS}, s46 offen offset:{1024 * (ks & 3)}')
        if (ks & 3) == 3 and ks < 31: e('s_add_u32 s46, s46, 4096')
    pre = stats_reduce(ST, T, T + 1) + stats_finish(T, T + 1, vA_, vB_)
    e(f's_mul_i32 s46, s44, {112 * 1024}\ns_lshl_b32 s48, s47, 13\ns_add_u32 s46, s46, s48\ns_add_u32 s46, s46, {sH}')
    barrier()
    stamp('w1_bl', 0)
    seq = [(ks, j) for ks in range(32) for j in range(2)] + [(ks, 2) for ks in range(32)] + [(ks, 3) for ks in range(32)]
    regs = {}; nfr = [0]; AH = 5
    def issue(n):
        if n >= len(seq): return
        ks, j = seq[n]
        b = BR + 4 * (nfr[0] % 6); nfr[0] += 1; regs[n] = b
        a = vB + j + 4 * (ks // 16); o = (ks % 16) * 4096
        e(f'ds_read_b64_tr_b16 v[{b}:{b+1}], v{a} offset:{o}\nds_read_b64_tr_b16 v[{b+2}:{b+3}], v{a} offset:{o + 2048}')
    for n in range(AH): issue(n)
    slots = []
    for n, (ks, j) in enumerate(seq):
        def mf(n=n, ks=ks, j=j):
            acc = ACC + 16 * j
            e(f'v_mfma_f32_32x32x16_bf16 {vr(acc,16)}, {vr(regs[n])}, {vr(A + 4*ks)}, {vr(acc, 16) if ks else 0}')
            issue(n + AH)
        slots.append([mf])
    def epi(j):
        acc = ACC + 16 * j; o = []
        o.append(f'ds_read_b128 {vr(CQ)}, v229 offset:{128 * j}')
        for q in range(4):
            cq = CQ + 4 * (q & 1)
            if q < 3: o.append(f'ds_read_b128 {vr(CQ + 4 * ((q + 1) & 1))}, v229 offset:{128 * j + 32 * (q + 1)}')
            R = [acc + 4 * q + k for k in range(4)]
            for k in range(4): o += [f'v_mul_f32 v{cq + k}, v{vB_}, v{cq + k}', f'v_fma_f32 v{R[k]}, v{vA_}, v{R[k]}, v{cq + k}']
            for k in range(4): o.append(f'v_mul_f32 v{T + k}, {fl(-LOG2E)}, v{R[k]}')
            for k in range(4): o.append(f'v_exp_f32 v{T + k}, v{T + k}')
            for k in range(4): o.append(f'v_add_f32 v{T + k}, 1.0, v{T + k}')
            for k in range(4): o.append(f'v_rcp_f32 v{T + k}, v{T + k}')
            for k in range(4): o.append(f'v_mul_f32 v{R[k]}, v{R[k]}, v{T + k}')
        o += cvt_inplace(acc)
        so = 's46' if j < 2 else 's48'
        o.append(lambda: store_act([f'buffer_store_dwordx4 {vr(acc)}, v{vo}, {SWS}, {so} offen offset:{2048 * (j & 1)}',
                                    f'buffer_store_dwordx4 {vr(acc + 8)}, v{vo}, {SWS}, {so} offen offset:{2048 * (j & 1) + 1024}']))
        return o
    merge(slots[:64], pre, start=8, per=2)
    barrier()
    e('s_add_u32 s48, s46, 4096')
    f01 = epi(0) + epi(1); f2 = epi(2)
    cut = (len(f01) * 3) // 5
    merge(slots[64:96], f01[:cut], start=3)
    merge(slots[96:128], f01[cut:] + f2, start=0)
    barrier()
    stamp('w1_loop', 0)
    e('s_nop 9')
    for x in epi(3):
        if callable(x): x()
        else: e(x)
    stamp('w1_st', 0)
    e('s_waitcnt vmcnt(0)')
    barrier()
    e(f's_branch {END}')
    e(f'{IDLE}:')
    for _ in range(5): barrier()
    e(f'{END}:')

def w1_phase():
    LH = g.lab('UH'); LD = g.lab('UD'); LE = g.lab('UE')
    e(f's_cmp_ge_u32 {sW}, 4\ns_cbranch_scc1 {LH}')
    w1_compute()
    e(f's_branch {LE}')
    e(f'{LH}:'); g.reset_track()
    e(f's_cmp_ge_u32 {sW}, 5\ns_cbranch_scc1 {LD}')
    arrive_local(); poll_local(True)
    barrier(); barrier()
    colsum('w1')
    barrier(); barrier(); barrier()
    e(f's_branch {LE}')
    e(f'{LD}:'); g.reset_track()
    barrier()
    e('s_waitcnt vmcnt(0)')
    barrier()
    colsum('w1')
    dma_w2_setup()
    dma_w2(0, 0, 30, 0)
    barrier()
    barrier()
    dma_w2(1, 0, 36, 0); dma_w2(0, 30, 36, 30)
    dma_w2(0, 36, 76, 36); dma_w2(1, 36, 76, 36)
    barrier()
    e(f'{LE}:'); g.reset_track()

def main():
    K = NAME + '_kernel'
    e(f'{K}:')
    e('s_cmp_ge_u32 s2, 256\ns_cbranch_scc1 L_END')
    e('s_load_dwordx4 s[44:47], s[0:1], 0\ns_load_dwordx2 s[48:49], s[0:1], 16\ns_load_dwordx4 s[52:55], s[0:1], 32')
    e('s_load_dwordx2 s[56:57], s[0:1], 48\ns_load_dwordx2 s[32:33], s[0:1], 56\ns_load_dwordx2 s[34:35], s[0:1], 64')
    e(f'v_lshrrev_b32 v1, 6, v0\ns_and_b32 {sG}, s2, 7\ns_lshr_b32 {sR}, s2, 3\nv_readfirstlane_b32 {sW}, v1')
    e(f's_mov_b32 {sMODE}, 1\ns_mov_b32 {sLAY}, 0\ns_mov_b32 {sEP}, 0\ns_mov_b32 {sGEP}, 0')
    e(f's_mov_b32 {sQ}, {QB[0]}\ns_mov_b32 {sO}, {OB[0]}\ns_mov_b32 {sX1}, {X1B[0]}\ns_mov_b32 {sH}, {HB[0]}\ns_mov_b32 {sST1}, {ST1[0]}')
    e('s_waitcnt lgkmcnt(0)')
    for base, src, size in ((4, 44, 2 * MB), (8, 46, 512 * 3072), (12, 48, 512 * 1024), (16, 52, 512 * 3584), (20, 54, 1792 * 1024), (24, 56, 2 * MB), (28, 34, WS_SIZE)):
        e(f's_mov_b32 s{base}, s{src}\ns_mov_b32 s{base+1}, s{src+1}\ns_mov_b32 s{base+2}, {size}\ns_mov_b32 s{base+3}, 0x20000')
    stamp('begin', 0)
    qkv_phase(True)
    e('L_LAYER:')
    attention()
    if STOP == 'att': e('s_endpgm')
    wo_phase()
    if STOP == 'wo': e('s_waitcnt vmcnt(0)\ns_endpgm')
    w1_phase()
    if STOP == 'w1': e('s_waitcnt vmcnt(0)\ns_endpgm')
    w2_phase()
    e(f's_cmp_lg_u32 {sLAY}, 0\ns_cbranch_scc1 L_END')
    if STOP == 'w2': e('s_waitcnt vmcnt(0)\ns_endpgm')
    e(f's_mov_b32 {sLAY}, 1')
    e(f's_mov_b32 {sQ}, {QB[1]}\ns_mov_b32 {sO}, {OB[1]}\ns_mov_b32 {sX1}, {X1B[1]}\ns_mov_b32 {sH}, {HB[1]}\ns_mov_b32 {sST1}, {ST1[1]}')
    qkv_phase(False)
    e('s_branch L_LAYER')
    e('L_END:')
    e('s_endpgm')
    errs = check_hazards(g.ins) + check_waits(g.ins)
    for x in errs: print(x, file=sys.stderr)
    head = f"""; fused 2-layer (MHA + SiLU FFN) block, one persistent launch: 256 workgroups x 8 waves, one per CU
; @launch grid=(256,1,1) block=(512,1,1) lds={LDS}
.amdgcn_target "amdgcn-amd-amdhsa--gfx950"
.text
.globl {K}
.p2align 8
.type {K},@function
"""
    tail = f""".section .rodata,"a"
.p2align 6
.amdhsa_kernel {K}
  .amdhsa_next_free_vgpr 256
  .amdhsa_next_free_sgpr 72
  .amdhsa_accum_offset 256
  .amdhsa_group_segment_fixed_size 0
  .amdhsa_kernarg_size 72
  .amdhsa_user_sgpr_count 2
  .amdhsa_user_sgpr_kernarg_segment_ptr 1
  .amdhsa_system_sgpr_workgroup_id_x 1
.end_amdhsa_kernel
"""
    out = [a for a in sys.argv[1:] if not a.startswith('--')]
    open(out[0] if out else 'out.s', 'w').write(head + g.text() + tail)
    if PROF:
        import json
        json.dump([[k[0], k[1], v] for k, v in stamp_idx.items()], open('stamps.json', 'w'))
    print('instructions:', sum(1 for i in g.ins if i.op), 'errors:', len(errs), file=sys.stderr)
main()
```

```python
import sys, math, struct
from asmlib import Gen, check_hazards, check_waits

NAME = 'interleave_layers__mha_block__dense_activation_silu__prompt'
OPT = {}
for a in sys.argv[1:]:
    if a.startswith('--'):
        k, _, v = a[2:].partition('='); OPT[k] = v or True
PROF = 'prof' in OPT
STOP = OPT.get('stop')
FORCE_SAFE = 'safe' in OPT
FORCE_DYN = 'dyn' in OPT
FORCE_SLOW = 'slowattn' in OPT
KVNT = ' nt' if 'kvnt' in OPT else ''

MB = 1 << 20
FL_LOC = 0; FL_GLB = 4096; PROFB = 65536
CSP1 = 1 * MB; CSPQ = CSP1 + 65536
KB = [2 * MB, 6 * MB]
ARENA = 656 * 1024; ASET = 16 * ARENA; AB = 10 * MB
A_Q, A_K, A_V, A_O, A_X, A_ST, A_H = 0, 131072, 262144, 393216, 524288, 655360, 0
WS_SIZE = AB + 12 * ASET
LDS = 163840
SMALL = 161792
CSQ = SMALL; CS1 = SMALL + 512
BCAST = SMALL + 1536
VST = 160768
XST = 98304
ITEM = 131072
VP = 544; STG = 8192 + 16 * VP; KV0 = SMALL - 8 * STG
W1R = 30720; W1P = W1R + 65536
RED = 65536
W2X, W2Y, W2Z = 0, W1P, W1R
RQ = [104, 108, 112, 116, 120, 124, 160, 164, 168, 172, 232, 236, 240]
WR = 104
SX, SWQ, SWO, SW1, SW2, SOUT, SWS = 's[4:7]', 's[8:11]', 's[12:15]', 's[16:19]', 's[20:23]', 's[24:27]', 's[28:31]'
DBG = 's[32:33]'; WSP = 's[34:35]'
sW, sG, sR, sMODE, sLAY, sEP, sGEP = 's36', 's37', 's38', 's39', 's40', 's41', 's42'
sRETRY = 's43'
sK, sAQ, sAO, sAX1, sAH, sAX2 = 's60', 's61', 's62', 's63', 's64', 's69'
sGQ = 's70'
sR0 = 's65'; sQT = 's66'
RES = 248
ONES = '0x3f803f80'
LOG2E = 1.4426950408889634

g = Gen()
e = g.e
def vr(a, n=4): return f'v[{a}:{a+n-1}]'
def fl(x): return hex(struct.unpack('<I', struct.pack('<f', x))[0])
def run(lst):
    for x in lst:
        if callable(x): x()
        else: e(x)
def lane(v): e(f'v_mbcnt_lo_u32_b32 v{v}, -1, 0\nv_mbcnt_hi_u32_b32 v{v}, -1, v{v}')
def barrier(): e('s_barrier')

stamp_idx = {}
def _sidx(name, role):
    key = (name, role)
    if key not in stamp_idx: stamp_idx[key] = len([k for k in stamp_idx if k[1] == role])
    assert stamp_idx[key] < 32
    return stamp_idx[key]
def _sstore(idx, role, src):
    e(f's_lshl_b32 s57, s2, 9\ns_mul_i32 s56, {sLAY}, 128\ns_add_u32 s57, s57, s56\ns_add_u32 s57, s57, {PROFB + role * 256 + idx * 4}')
    e('s_waitcnt lgkmcnt(0)')
    e(f'v_mov_b32 v246, s57\nv_mov_b32 v247, {src}')
    e(f'global_store_dword v246, v247, {WSP}')
def stamp(name, role):
    if not PROF: return
    e('s_memrealtime s[58:59]'); _sstore(_sidx(name, role), role, 's58')
def lstamp(i):
    if PROF: e(f's_memrealtime s[{72 + 2*i}:{73 + 2*i}]')
def lstamp_flush(names):
    if not PROF: return
    for i, n in enumerate(names): _sstore(_sidx(n, 0), 0, f's{72 + 2*i}')

def merge(slots, fill, start=0, per=None):
    n = len(slots) - start
    k = 0
    for i, s in enumerate(slots):
        run(s)
        if i >= start:
            tgt = len(fill) if i == len(slots) - 1 else (min(len(fill), (i - start + 1) * per) if per else (len(fill) * (i - start + 1)) // n)
            run(fill[k:tgt]); k = max(k, tgt)

def bounded_poll(load, test):
    L = g.lab('POLL'); X = g.lab('POLLX')
    e('s_mov_b32 s50, 0x40000')
    e(f'{L}:')
    e(load)
    e('s_waitcnt vmcnt(0)')
    e(test)
    e(f's_sub_u32 s50, s50, 1\ns_cmp_eq_u32 s50, 0\ns_cbranch_scc1 {X}')
    e(f's_cbranch_vccnz {L}')
    e(f'{X}:')

def arrive_local():
    A = g.lab('ARS'); B = g.lab('ARD')
    e(f's_add_u32 {sEP}, {sEP}, 1')
    e(f's_lshl_b32 s50, {sG}, 8\ns_lshl_b32 s51, {sR}, 2\ns_add_u32 s50, s50, s51')
    e(f'v_mov_b32 v1, s50\nv_mov_b32 v2, {sEP}')
    e('s_mov_b64 exec, 1')
    e(f's_cmp_lg_u32 {sMODE}, 0\ns_cbranch_scc1 {A}')
    e(f'global_store_dword v1, v2, {WSP} offset:{FL_LOC}')
    e(f's_branch {B}')
    e(f'{A}:')
    e(f'global_store_dword v1, v2, {WSP} offset:{FL_LOC} sc1')
    e(f'{B}:')
    e('s_mov_b64 exec, -1')

def poll_local(kind):
    lane(3)
    if kind == 'half':
        e(f'v_and_b32 v3, 15, v3\ns_and_b32 s51, {sR}, 16\ns_lshl_b32 s51, s51, 2\ns_lshl_b32 s50, {sG}, 8\ns_add_u32 s50, s50, s51')
    elif kind == 'all':
        e(f'v_and_b32 v3, 31, v3\ns_lshl_b32 s50, {sG}, 8')
    else:
        e(f'v_and_b32 v4, 1, v3\nv_and_b32 v3, 2, v3\nv_lshl_add_u32 v3, v3, 3, v4\ns_lshr_b32 s51, {sR}, 2\ns_lshl_b32 s51, s51, 3\ns_lshl_b32 s50, {sG}, 8\ns_add_u32 s50, s50, s51')
    e('v_lshl_add_u32 v3, v3, 2, s50')
    bounded_poll(f'global_load_dword v4, v3, {WSP} offset:{FL_LOC} sc1', f'v_cmp_gt_u32 vcc, {sEP}, v4')

def send_global(va, vb):
    lane(va)
    e(f's_and_b32 s50, {sR0}, 15\ns_lshr_b32 s50, s50, 1\ns_lshl_b32 s50, s50, 9\ns_lshl_b32 s51, {sGQ}, 6\ns_add_u32 s50, s50, s51')
    e(f's_lshr_b32 s51, {sR0}, 4\ns_lshl_b32 s51, s51, 5\ns_add_u32 s50, s50, s51\ns_and_b32 s51, {sR0}, 1\ns_lshl_b32 s51, s51, 4\ns_add_u32 s50, s50, s51')
    e(f's_lshl_b32 s51, {sW}, 2\ns_add_u32 s50, s50, s51\ns_add_u32 s50, s50, {FL_GLB}')
    e(f'v_lshl_add_u32 v{va}, v{va}, 12, s50\nv_mov_b32 v{vb}, {sGEP}')
    e('s_waitcnt vmcnt(0)\ns_mov_b64 exec, 0xff')
    e(f'global_store_dword v{va}, v{vb}, {WSP} sc1')
    e('s_mov_b64 exec, -1')

def register_start():
    e('s_getreg_b32 s44, hwreg(HW_REG_XCC_ID)\ns_and_b32 s44, s44, 15')
    e(f's_lshr_b32 s50, s2, 5\ns_lshl_b32 s50, s50, 8\ns_and_b32 s51, s2, 31\ns_lshl_b32 s51, s51, 2\ns_add_u32 s50, s50, s51')
    e(f's_lshl_b32 s51, s2, 7\ns_add_u32 s51, s51, {FL_GLB}')
    lane(2)
    e('v_mov_b32 v1, s50\nv_lshl_add_u32 v2, v2, 2, s51\nv_mov_b32 v3, 0')
    e('s_mov_b32 exec_hi, 0')
    e(f'global_store_dword v2, v3, {WSP} sc1')
    e('s_mov_b64 exec, 1')
    e(f'global_store_dword v1, v3, {WSP} offset:{FL_LOC} sc1')
    barrier()
    e('s_waitcnt vmcnt(0)')
    e('s_and_b32 s50, s2, 3\ns_lshl_b32 s50, s50, 3\ns_add_u32 s51, s44, 1\ns_lshl_b32 s51, s51, s50\ns_and_b32 s50, s2, 0xfc')
    e('v_mov_b32 v1, s50\nv_mov_b32 v2, s51')
    e(f'global_atomic_or v1, v2, {DBG} sc1')
    e('s_mov_b64 exec, -1')

def register_resolve():
    lane(3)
    e('v_lshlrev_b32 v5, 2, v3')
    test = ('v_and_b32 v6, 0xff, v4\nv_bfe_u32 v7, v4, 8, 8\nv_bfe_u32 v8, v4, 16, 8\nv_lshrrev_b32 v9, 24, v4\n'
            'v_min_u32 v10, v6, v7\nv_min3_u32 v10, v10, v8, v9\nv_cmp_eq_u32 vcc, 0, v10')
    bounded_poll(f'global_load_dword v4, v5, {DBG} sc1', test)
    e(f's_mov_b32 {sMODE}, {1 if FORCE_SAFE else 0}')
    for x in range(8):
        e('s_mov_b32 s52, 0')
        for b in range(4):
            e(f'v_cmp_eq_u32 vcc, {x + 1}, v{6 + b}\ns_nop 0\ns_bcnt1_i32_b64 s51, vcc\ns_add_u32 s52, s52, s51')
        e(f's_cmp_lg_u32 s52, 32\ns_cselect_b32 s51, 1, 0\ns_or_b32 {sMODE}, {sMODE}, s51')
    e('s_add_u32 s53, s44, 1\ns_mov_b32 s52, 0')
    for b in range(4):
        e(f'v_add_u32 v10, {b}, v5\nv_cmp_gt_u32 s[54:55], s2, v10\nv_cmp_eq_u32 vcc, s53, v{6 + b}\ns_nop 0\ns_and_b64 vcc, vcc, s[54:55]\ns_bcnt1_i32_b64 s51, vcc\ns_add_u32 s52, s52, s51')
    e('v_readlane_b32 s54, v4, 0\nv_readlane_b32 s55, v4, 1\nv_and_b32 v10, 1, v3\nv_cmp_eq_u32 vcc, 0, v10\nv_mov_b32 v11, s54\nv_mov_b32 v12, s55\nv_cndmask_b32 v11, v12, v11, vcc')
    e(f'v_cmp_ne_u32 vcc, v11, v4\ns_nop 0\ns_cmp_lg_u64 vcc, 0\ns_cselect_b32 {sQT}, 1, {1 if FORCE_DYN else 0}')
    e(f's_andn2_b32 s51, {sQT}, {sMODE}\ns_or_b32 {sQT}, {sQT}, {sMODE}')
    e(f's_cmp_lg_u32 s51, 0\ns_cselect_b32 {sG}, s44, {sG}\ns_cselect_b32 {sR}, s52, {sR}')
    e(f's_lshl_b32 s50, {sR}, 8\ns_lshl_b32 s51, {sMODE}, 16\ns_or_b32 s50, s50, s51\ns_lshl_b32 s51, {sQT}, 17\ns_or_b32 s50, s50, s51\ns_or_b32 s50, s50, {sG}')
    e(f'v_mov_b32 v1, {BCAST}\nv_mov_b32 v2, s50\nds_write_b32 v1, v2\ns_waitcnt lgkmcnt(0)')

def bcast_issue(v): return [f'v_mov_b32 v{v}, {BCAST}', f'ds_read_b32 v{v}, v{v}']
def bcast_take(v):
    return [f'v_readfirstlane_b32 s50, v{v}', 's_nop 0', f's_and_b32 {sG}, s50, 7', f's_bfe_u32 {sR}, s50, 0x50008', f's_bfe_u32 {sMODE}, s50, 0x10010', f's_bfe_u32 {sQT}, s50, 0x10011']

def store_act(lines, flag=sMODE):
    A = g.lab('STS'); B = g.lab('STD')
    for l in lines:
        if l.startswith('buffer'): g.wait_for(*[t.strip() for t in l.split(None, 1)[1].split(',')[:2]])
    e(f's_cmp_lg_u32 {flag}, 0\ns_cbranch_scc1 {A}')
    save = list(g.vm)
    for l in lines: e(l)
    e(f's_branch {B}')
    e(f'{A}:')
    g.vm = save
    for l in lines: e(l + (' sc1' if l.startswith('buffer') else ''))
    e(f'{B}:')

def dma_loop(n, first, stride, body, cnt='s52'):
    L = g.lab('DL'); X = g.lab('DX')
    e(f's_mov_b32 {cnt}, {first}')
    e(f's_cmp_ge_u32 {cnt}, {n}\ns_cbranch_scc1 {X}')
    e(f'{L}:')
    body()
    e(f's_add_u32 {cnt}, {cnt}, {stride}\ns_cmp_lt_u32 {cnt}, {n}\ns_cbranch_scc1 {L}')
    e(f'{X}:')

def s_qkv_cols(r):
    e(f's_and_b32 s50, {r}, 15\ns_lshr_b32 s51, s50, 1\ns_and_b32 s50, s50, 1')
    e('s_lshl_b32 s53, s50, 10\ns_lshl_b32 s54, s51, 7\ns_add_u32 s53, s53, s54')
    e('s_lshl_b32 s55, s50, 6\ns_add_u32 s54, s54, s55\ns_add_u32 s54, s54, 2048')

def addr_qkvB(r):
    lane(9)
    s_qkv_cols(r)
    e('s_sub_u32 s54, s54, 128')
    for i in range(3):
        e(f'v_add_u32 v13, {64 * i}, v9\nv_mul_u32_u24 v14, 171, v13\nv_lshrrev_b32 v14, 11, v14')
        e('v_mul_u32_u24 v15, 12, v14\nv_sub_u32 v15, v13, v15')
        e('v_mov_b32 v16, s53\nv_mov_b32 v17, s54\nv_cmp_gt_u32 vcc, 8, v15\ns_nop 1\nv_cndmask_b32 v16, v17, v16, vcc')
        e(f'v_lshl_add_u32 v16, v15, 4, v16\nv_mul_u32_u24 v14, 3072, v14\nv_add_u32 v{10 + i}, v14, v16')
def qkvB_block(ks):
    e(f's_mul_i32 s53, {ks}, 3072\ns_mul_i32 s54, {ks}, 49152')
    for i in range(3):
        e(f's_add_u32 m0, s53, {1024 * i}\ns_nop 0')
        e(f'buffer_load_dwordx4 v{10 + i}, {SWQ}, s54 offen lds')
def dma_qkvB(lo, hi):
    e(f's_add_u32 s56, {sW}, {lo - 5}')
    dma_loop(hi, 's56', 3, lambda: qkvB_block('s52'))

def addr_128(v, stride):
    lane(v)
    e(f'v_lshrrev_b32 v13, 3, v{v}\nv_and_b32 v14, 7, v{v}\nv_lshlrev_b32 v15, 1, v13\nv_and_b32 v15, 4, v15\nv_xor_b32 v14, v14, v15')
    e(f'v_mul_u32_u24 v13, {stride}, v13\nv_lshl_add_u32 v{v}, v14, 4, v13')

def s_fb(dst):
    e(f's_and_b32 {dst}, {sR}, 15\ns_min_u32 {dst}, {dst}, 13\ns_lshl_b32 {dst}, {dst}, 8')

def w1_instr(n, v, sfb):
    e(f's_lshl_b32 s53, {n}, 10\ns_add_u32 m0, s53, {W1R}\ns_and_b32 s53, {n}, 63\ns_mul_i32 s53, s53, 28672\ns_add_u32 s53, s53, {sfb}')
    e(f's_cmp_lt_u32 {n}, 64\ns_cselect_b32 s51, 128, 0\ns_add_u32 s53, s53, s51')
    e(f'buffer_load_dwordx4 v{v}, {SW1}, s53 offen lds')
def dma_w1(lo, hi):
    addr_128(9, 3584); s_fb('s55')
    e(f's_add_u32 s56, {sW}, {lo - 5}')
    dma_loop(hi, 's56', 3, lambda: w1_instr('s52', 9, 's55'))

def dma_w2(region):
    addr_128(9, 1024)
    e(f's_and_b32 s55, {sR}, 7\ns_lshl_b32 s55, s55, 7\ns_sub_u32 s56, {sW}, 5')
    def bx():
        e(f's_lshl_b32 m0, s52, 10\ns_lshl_b32 s54, s52, 13\ns_add_u32 s54, s54, s55\ns_cmp_ge_u32 s52, 14\ns_cselect_b32 s51, {(896 - 112) * 1024}, 0\ns_add_u32 s54, s54, s51')
        e(f'buffer_load_dwordx4 v9, {SW2}, s54 offen lds')
    def by():
        e(f's_lshl_b32 s53, s52, 10\ns_add_u32 m0, s53, {W2Y}\ns_lshl_b32 s54, s52, 13\ns_add_u32 s54, s54, s55\ns_cmp_ge_u32 s52, 32\ns_cselect_b32 s51, {(896 - 256) * 1024}, 0\ns_add_u32 s54, s54, s51\ns_add_u32 s54, s54, {112 * 1024}')
        e(f'buffer_load_dwordx4 v9, {SW2}, s54 offen lds')
    if region == 'X': dma_loop(28, 's56', 3, bx)
    else: dma_loop(64, 's56', 3, by)

def w2_regs_load():
    addr_128(9, 1024)
    e(f's_and_b32 s50, {sW}, 1\ns_mul_i32 s50, s50, 896\ns_bfe_u32 s51, {sW}, 0x10001\ns_lshl_b32 s51, s51, 3\ns_add_u32 s50, s50, s51\ns_add_u32 s50, s50, 368\ns_lshl_b32 s50, s50, 10')
    e(f's_and_b32 s51, {sR}, 7\ns_lshl_b32 s51, s51, 7\ns_add_u32 s50, s50, s51')
    for m in range(33):
        e(f'buffer_load_dwordx4 {vr(WR + 4 * m)}, v9, {SW2}, s50 offen\ns_add_u32 s50, s50, 16384')
def w2_regs_put(part):
    lane(9)
    e(f's_and_b32 s50, {sW}, 1\ns_bfe_u32 s51, {sW}, 0x10001\ns_lshl_b32 s51, s51, 10\nv_lshl_add_u32 v9, v9, 4, s51')
    if part == 'Z':
        e(f's_lshl_b32 s50, s50, 15\ns_add_u32 s50, s50, {W2Z}\nv_add_u32 v10, s50, v9')
        for m in range(16): e(f'ds_write_b128 v10, {vr(WR + 4 * m)} offset:{2048 * m}')
    else:
        e(f's_mul_i32 s51, s50, 14336\nv_add_u32 v10, s51, v9\ns_lshl_b32 s50, s50, 15\ns_add_u32 s50, s50, {W2Y}\nv_add_u32 v11, s50, v9')
        for m in range(17):
            e(f'ds_write_b128 v{10 if m < 7 else 11}, {vr(WR + 64 + 4 * m)} offset:{2048 * (m if m < 7 else m - 7)}\ns_waitcnt lgkmcnt(0)')
    e('s_waitcnt lgkmcnt(0)')

def tr_lane_parts(vl, t0):
    e(f'v_bfe_u32 v{t0}, v{vl}, 2, 2\nv_bfe_u32 v{t0+1}, v{vl}, 4, 1\nv_lshlrev_b32 v{t0+1}, 5, v{t0+1}\nv_and_b32 v{t0+2}, 3, v{vl}')
    e(f'v_lshl_add_u32 v{t0+1}, v{t0+2}, 3, v{t0+1}\nv_lshrrev_b32 v{t0+2}, 5, v{vl}')
def tr128(dst, t0, ft):
    e(f'v_lshl_add_u32 v{dst}, v{t0+2}, 2, v{t0}\nv_lshlrev_b32 v{dst}, 7, v{dst}\nv_add_u32 v{dst}, v{dst}, v{t0+1}')
    e(f'v_lshrrev_b32 v{dst+1}, 1, v{t0}\nv_xor_b32 v{dst+1}, {ft}, v{dst+1}\nv_lshl_add_u32 v{dst}, v{dst+1}, 6, v{dst}\nv_xor_b32 v{dst+1}, 64, v{dst}')
def trrd(b, a, o, second): return f'ds_read_b64_tr_b16 v[{b}:{b+1}], v{a} offset:{o}\nds_read_b64_tr_b16 v[{b+2}:{b+3}], v{a} offset:{o + second}'

def qkv0_loader():
    SK = g.lab('QSK'); SK2 = g.lab('QSK')
    e('s_setprio 3')
    addr_qkvB(sR)
    e(f's_sub_u32 s52, {sW}, 6\ns_cmp_eq_u32 {sW}, 5\ns_cbranch_scc1 {SK}')
    qkvB_block('s52')
    e(f'{SK}:')
    for i in range(1, 11):
        e('s_add_u32 s52, s52, 3'); qkvB_block('s52')
    e('s_waitcnt lgkmcnt(0)')
    barrier()
    tr_lane_parts(9, 13)
    e(f'v_lshl_add_u32 v16, v15, 2, v13\nv_mul_u32_u24 v16, 192, v16\nv_add_u32 v16, v16, v14\ns_sub_u32 s52, {sW}, 3\ns_mul_i32 s52, s52, 3072')
    e(f's_max_u32 s53, {sW}, 6\ns_sub_u32 s53, s53, 6\ns_mul_i32 s53, s53, 3072\nv_add_u32 v36, s53, v16\nv_add_u32 v37, s52, v16\nv_add_u32 v38, {5 * 9216}, v37')
    for k in range(12): e(f'v_mov_b32 v{40 + k}, 0')
    for i in range(11):
        g.raw(f's_waitcnt vmcnt({3 * (10 - i)})')
        if i == 0: e(f's_cmp_eq_u32 {sW}, 5\ns_cbranch_scc1 {SK2}')
        for j in range(3): e(trrd(24 + 4 * j, 36 + (i + 4) // 5, ((i - 1) % 5 if i else 0) * 9216 + 64 * j, 1536))
        for j in range(3):
            for k in range(4): e(f'v_dot2c_f32_bf16 v{40 + 4*j + k}, {ONES}, v{24 + 4*j + k}')
        if i == 0: e(f'{SK2}:')
    e(f'v_and_b32 v9, 31, v9\nv_lshlrev_b32 v9, 2, v9\nv_add_u32 v9, {CSQ}, v9')
    for j in range(3): e(f'v_add_f32 v{40 + 4*j}, v{40 + 4*j}, v{41 + 4*j}\nv_add_f32 v{42 + 4*j}, v{42 + 4*j}, v{43 + 4*j}\nv_add_f32 v{40 + 4*j}, v{40 + 4*j}, v{42 + 4*j}')
    for j in range(3): e(f'ds_add_f32 v9, v{40 + 4*j} offset:{128 * j}')
    e('s_waitcnt lgkmcnt(0)\ns_setprio 0')

def items_issue():
    for k, (srd, stride, n) in enumerate(((SW1, 3584, 224), (SWQ, 3072, 192))):
        X = g.lab('ITX')
        addr_128(9, stride)
        e(f's_cmp_ge_u32 s2, {n}\ns_cbranch_scc1 {X}')
        e(f's_and_b32 s50, s2, 7\ns_mul_i32 s50, s50, {64 * stride}\ns_lshr_b32 s51, s2, 3\ns_lshl_b32 s51, s51, 7\ns_add_u32 s50, s50, s51')
        for i in range(8):
            e(f's_mov_b32 m0, {ITEM + 8192 * k + 1024 * i}\ns_nop 0\nbuffer_load_dwordx4 v9, {srd}, s50 offen lds\ns_add_u32 s50, s50, {8 * stride}')
        e(f'{X}:')
def items_finish():
    lane(9); tr_lane_parts(9, 13); tr128(16, 13, 0)
    e(f'v_add_u32 v16, {ITEM}, v16\nv_add_u32 v17, {ITEM}, v17\nv_lshlrev_b32 v9, 2, v9')
    for k, (base, ncol, n) in enumerate(((CSP1, 1792, 224), (CSPQ, 1536, 192))):
        X = g.lab('ITY')
        e(f's_cmp_ge_u32 s2, {n}\ns_cbranch_scc1 {X}')
        for q in range(4): e(f'v_mov_b32 v{18 + q}, 0')
        for ks in range(4):
            for j in range(2): e(trrd(24 + 8 * ks + 4 * j, 16 + j, 8192 * k + 2048 * ks, 1024))
        for ks in range(4):
            for j in range(2):
                for q in range(4): e(f'v_dot2c_f32_bf16 v{18 + 2*j + (q & 1)}, {ONES}, v{24 + 8*ks + 4*j + q}')
        e('s_nop 2\nv_add_f32 v18, v18, v19\nv_add_f32 v20, v20, v21\ns_nop 1\nv_permlane32_swap_b32 v18, v20\nv_add_f32 v18, v18, v20')
        e(f's_and_b32 s50, s2, 7\ns_mul_i32 s50, s50, {4 * ncol}\ns_lshr_b32 s51, s2, 3\ns_lshl_b32 s51, s51, 8\ns_add_u32 s50, s50, s51\ns_add_u32 s50, s50, {base}')
        e(f'buffer_store_dword v18, v9, {SWS}, s50 offen sc1')
        e(f'{X}:')
def tables_build():
    X = g.lab('TBX'); Q = g.lab('TBQ'); J = g.lab('TBJ')
    e(f's_cmp_lg_u32 {sLAY}, 0\ns_cbranch_scc1 {X}\ns_cmp_eq_u32 {sW}, 7\ns_cbranch_scc1 {X}')
    lane(20)
    e(f'v_lshlrev_b32 v21, 2, v20\ns_cmp_eq_u32 {sW}, 6\ns_cbranch_scc1 {Q}')
    s_fb('s53'); e(f's_lshl_b32 s53, s53, 1\ns_add_u32 s53, s53, {CSP1}\ns_add_u32 s54, s53, 256\ns_mov_b32 s55, {4 * 1792}\nv_mov_b32 v22, v21\nv_add_u32 v23, {CS1}, v21\nv_add_u32 v24, 256, v23')
    e(f's_branch {J}')
    e(f'{Q}:')
    s_qkv_cols(sR)
    e(f's_lshl_b32 s53, s53, 1\ns_lshl_b32 s54, s54, 1\ns_add_u32 s53, s53, {CSPQ}\ns_add_u32 s54, s54, {CSPQ}\ns_mov_b32 s55, {4 * 1536}')
    e(f'v_and_b32 v22, 127, v21\nv_add_u32 v23, {CSQ}, v21\nv_add_u32 v24, {CSQ + 256}, v22')
    e(f'{J}:')
    for rb in range(8):
        e(f'buffer_load_dword v{26 + rb}, v21, {SWS}, s53 offen sc1\nbuffer_load_dword v{34 + rb}, v22, {SWS}, s54 offen sc1\ns_add_u32 s53, s53, s55\ns_add_u32 s54, s54, s55')
    for rb in range(1, 8): e(f'v_add_f32 v26, v26, v{26 + rb}\nv_add_f32 v34, v34, v{34 + rb}')
    e('ds_write_b32 v23, v26\nds_write_b32 v24, v34\ns_waitcnt lgkmcnt(0)')
    e(f'{X}:')

def stats_finish(vS, vQ, vA, ext, vL):
    return [f'v_mul_f32 v{vS}, {fl(-1/512)}, v{vS}', f'v_mul_f32 v{vQ}, {fl(1/512)}, v{vQ}',
            f'v_fma_f32 v{vQ}, -v{vS}, v{vS}, v{vQ}', f'v_max_f32 v{vQ}, 0, v{vQ}', f'v_add_f32 v{vQ}, {fl(1e-5)}, v{vQ}',
            f'v_rsq_f32 v{vA}, v{vQ}', f'v_cmp_gt_u32 vcc, 32, v{vL}',
            f'v_cvt_pk_bf16_f32 v{ext}, v{vS}, v{vS}', f'v_lshlrev_b32 v{vQ}, 16, v{ext}', f'v_sub_f32 v{vS}, v{vS}, v{vQ}',
            f'v_cvt_pk_bf16_f32 v{ext+1}, v{vS}, 0', f'v_cndmask_b32 v{ext}, 0, v{ext}, vcc', f'v_cndmask_b32 v{ext+1}, 0, v{ext+1}, vcc',
            f'v_mov_b32 v{ext+2}, 0', f'v_mov_b32 v{ext+3}, 0']
def ext_w(ext, vaddr, off):
    return [f'ds_read_b32 v{ext+2}, v{vaddr} offset:{off}', f'v_cvt_pk_bf16_f32 v{ext+1}, v{ext+2}, 0', f'v_lshlrev_b32 v{ext+3}, 16, v{ext+1}',
            f'v_sub_f32 v{ext+3}, v{ext+2}, v{ext+3}', f'v_cvt_pk_bf16_f32 v{ext}, v{ext+2}, v{ext+3}', f'v_mov_b32 v{ext+2}, 0', f'v_mov_b32 v{ext+3}, 0']
def stats_load(sbase, t0, vOff4):
    for ft in range(16): e(f'buffer_load_dword v{t0 + ft}, v{vOff4}, {SWS}, {sbase} offen offset:{ft * 256} sc1')
def stats_reduce(t0, vS, vQ):
    o = []
    for s in (8, 4, 2, 1):
        for k in range(s): o.append(f'v_add_f32 v{t0 + k}, v{t0 + k}, v{t0 + k + s}')
    o += [f'v_mov_b32 v{vS}, v{t0}', f'v_mov_b32 v{vQ}, v{t0}', 's_nop 1', f'v_permlane32_swap_b32 v{vS}, v{vQ}']
    return o
def cvt_half(acc):
    return [f'v_cvt_pk_bf16_f32 v{acc + k}, v{acc + 2 * k}, v{acc + 2 * k + 1}' for k in range(4)]

AINIT = int(OPT.get('ainit', 10))
class ALoader:
    def __init__(self, A, _, sreg, n, vaddr): self.A, self.s, self.n, self.v, self.k = A, sreg, n, vaddr, 0
    def issue(self, cnt, limit=None):
        for _ in range(cnt):
            ks = self.k
            if ks >= self.n or (limit is not None and ks >= limit): return
            self.k += 1
            e(f'buffer_load_dwordx4 {vr(self.A + 4 * (ks % 32))}, v{self.v}, {SWS}, {self.s} offen offset:{1024 * (ks & 3)} sc1')
            if (ks & 3) == 3: e(f's_add_u32 {self.s}, {self.s}, 4096')

def qkv_compute(first):
    A = 0; ACC = 128; BR = 176; vB = 208; vL = 212; vA_ = 213; vo = 214; vo2 = 215; T = 216; vAo = 159
    EX = 232; EW = [236, 240, 244]
    e('s_setprio 1')
    lane(vL)
    e(f's_lshr_b32 s44, {sR}, 4\ns_lshl_b32 s45, {sG}, 1\ns_add_u32 s44, s44, s45\ns_mul_i32 s71, s44, {ARENA}\ns_lshl_b32 s44, s44, 2\ns_add_u32 s44, s44, {sW}')
    if first:
        e(f'v_lshrrev_b32 v{T}, 3, v{vL}\nv_and_b32 v{T+1}, 7, v{vL}\nv_lshlrev_b32 v{T+2}, 10, v{T}\nv_lshl_add_u32 v{T+2}, v{T+1}, 4, v{T+2}')
        e('s_lshl_b32 s45, s44, 15\ns_add_u32 s46, s45, 8192\ns_add_u32 s47, s45, 16384\ns_add_u32 s48, s45, 24576')
        for q in range(8):
            for i in range(4): e(f'buffer_load_dwordx4 {vr(A + 16 * q + 4 * i)}, v{T+2}, {SX}, s{45 + i} offen offset:{128 * q}')
        e(f'v_lshlrev_b32 v{T+3}, 2, v{vL}\nv_add_u32 v{T+3}, {CSQ}, v{T+3}\nv_mov_b32 v{T+4}, 0\nds_write_b32 v{T+3}, v{T+4}\nds_write_b32 v{T+3}, v{T+4} offset:256\ns_waitcnt lgkmcnt(0)')
        barrier()
        e(f's_lshl_b32 s49, {sW}, 13\ns_add_u32 s49, s49, {XST}')
        e(f'v_lshrrev_b32 v{T+3}, 4, v{vL}\nv_xor_b32 v{T+3}, v{T+3}, v{T+1}\nv_lshlrev_b32 v{T+4}, 7, v{T}\nv_add_u32 v{T+4}, s49, v{T+4}')
        e(f'v_lshl_add_u32 v{T+5}, v{T+3}, 4, v{T+4}\nv_xor_b32 v{T+3}, 4, v{T+3}\nv_lshl_add_u32 v{T+6}, v{T+3}, 4, v{T+4}')
        e(f'v_and_b32 v{T}, 31, v{vL}\nv_lshrrev_b32 v{T+1}, 5, v{vL}\nv_bfe_u32 v{T+3}, v{vL}, 1, 3\nv_xor_b32 v{T+1}, v{T+1}, v{T+3}')
        e(f'v_lshlrev_b32 v{T}, 7, v{T}\nv_add_u32 v{T}, s49, v{T}')
        for s in range(4): e(f'v_xor_b32 v{T+3}, {2 * s}, v{T+1}\nv_lshl_add_u32 v{T+7+s}, v{T+3}, 4, v{T}')
        for k in range(4): e(f'v_mov_b32 v{T+12+k}, 0')
        def dots(q):
            for r in range(16):
                e(f'v_dot2c_f32_bf16 v{T+12+(r&1)}, {ONES}, v{A + 16*q + r}\nv_dot2c_f32_bf16 v{T+14+(r&1)}, v{A + 16*q + r}, v{A + 16*q + r}')
        for q in range(8):
            for i in range(4): e(f'ds_write_b128 v{T+5+(i&1)}, {vr(A + 16*q + 4*i)} offset:{1024*i + 4096*(q&1)}')
            for s in range(4): e(f'ds_read_b128 {vr(A + 16*q + 4*s)}, v{T+7+s} offset:{4096*(q&1)}')
            if q: dots(q - 1)
        dots(7)
        e(f's_nop 2\nv_add_f32 v{T+12}, v{T+12}, v{T+13}\nv_add_f32 v{T+14}, v{T+14}, v{T+15}\ns_nop 1\nv_permlane32_swap_b32 v{T+12}, v{T+14}')
        e(f'v_add_f32 v{T+12}, v{T+12}, v{T+14}\nv_mov_b32 v{T+14}, v{T+12}\ns_nop 1\nv_permlane32_swap_b32 v{T+12}, v{T+14}')
        run(stats_finish(T + 12, T + 14, vA_, EX, vL))
        pre = []
    else:
        e(f'v_lshlrev_b32 v{vo2}, 2, v{vL}\nv_lshlrev_b32 v{vAo}, 4, v{vL}')
        e(f's_add_u32 s55, s71, {sAX2}\ns_lshl_b32 s45, {sW}, 12\ns_add_u32 s45, s45, s55\ns_add_u32 s45, s45, {A_ST}\ns_lshl_b32 s47, {sW}, 15\ns_add_u32 s55, s55, s47\ns_add_u32 s55, s55, {A_X}')
    tr_lane_parts(vL, BR)
    r_, c_, h_ = BR, BR + 1, BR + 2
    if first: e(f'v_lshl_add_u32 v{vB}, v{h_}, 3, v{r_}\nv_add_u32 v{vB+1}, 4, v{vB}')
    else: e(f'v_lshl_add_u32 v{vB}, v{h_}, 2, v{r_}\nv_add_u32 v{vB+1}, 8, v{vB}')
    for k in range(2): e(f'v_mul_u32_u24 v{vB+k}, 192, v{vB+k}\nv_add_u32 v{vB+k}, v{vB+k}, v{c_}\nv_add_u32 v{vB+2+k}, 49152, v{vB+k}')
    if not first:
        barrier()
        stamp('qkv_start', 0)
        stats_load('s45', T, vo2)
        al = ALoader(A, vo2 + 0, 's55', 32, vaddr=vAo)
        al.issue(AINIT)
        pre = stats_reduce(T, EW[0], EW[0] + 1) + stats_finish(EW[0], EW[0] + 1, vA_, EX, vL)
    barrier()
    stamp('qkv_bl', 0)
    nfr = [0]
    seq = [(ks, j) for ks in range(32) for j in (2, 0)] + [(ks, 1) for ks in range(32)]
    regs = {}; AH = 6
    def issue(n):
        if n >= len(seq): return
        ks, j = seq[n]
        b = BR + 4 * (nfr[0] % 8); nfr[0] += 1; regs[n] = b
        a = vB + 2 * (ks // 16); o = (ks % 16) * 3072 + 64 * j
        e(f'ds_read_b64_tr_b16 v[{b}:{b+1}], v{a} offset:{o}\nds_read_b64_tr_b16 v[{b+2}:{b+3}], v{a+1} offset:{o}')
    for n in range(AH): issue(n)
    def mm(j, w, x, c):
        acc = ACC + 16 * j
        return f'v_mfma_f32_32x32x16_bf16 {vr(acc,16)}, {vr(w if j < 2 else x)}, {vr(x if j < 2 else w)}, {vr(acc,16) if c else 0}'
    slots = []
    for n, (ks, j) in enumerate(seq):
        def mf(n=n, ks=ks, j=j):
            e(mm(j, regs[n], A + 4 * ks, ks)); issue(n + AH)
            if not first and n & 1: al.issue(1)
        slots.append([mf])
    pre += [f'v_and_b32 v{T+15}, 31, v{vL}', f'v_lshlrev_b32 v{T+15}, 2, v{T+15}', f's_lshl_b32 s52, {sW}, 8', f's_add_u32 s52, s52, {VST}',
            f'v_add_u32 v{vo}, s52, v{T+15}', f'ds_write_b32 v{vo}, v{vA_}', f'v_add_u32 v{T+15}, {CSQ}, v{T+15}']
    for j in range(3): pre += ext_w(EW[j], T + 15, 128 * j)
    pre += [f'v_lshrrev_b32 v{vo}, 5, v{vL}', f'v_lshl_add_u32 v{vo}, v{vo}, 4, s52']
    for q in range(4): pre.append(f'ds_read_b128 {vr(T + 4*q)}, v{vo} offset:{32*q}')
    pre += [f's_and_b32 s49, {sR0}, 15', 's_lshr_b32 s51, s49, 1', 's_and_b32 s49, s49, 1',
            f's_lshl_b32 s45, {sW}, 10', f's_add_u32 s45, s45, {sAQ}', 's_add_u32 s45, s45, s71', 's_lshl_b32 s52, s51, 14', 's_add_u32 s45, s45, s52',
            f's_add_u32 s46, s45, {A_V}', 's_lshl_b32 s52, s49, 13', 's_add_u32 s46, s46, s52',
            's_lshl_b32 s52, s49, 17', 's_add_u32 s45, s45, s52',
            's_lshl_b32 s53, s44, 10', f's_add_u32 s53, s53, {sK}', 's_lshl_b32 s54, s51, 18', 's_add_u32 s53, s53, s54',
            f's_add_u32 s54, s53, {2 * MB}', 's_add_u32 s54, s54, s52',
            f's_cmp_eq_u32 s49, 0\ns_cselect_b32 s47, {fl(0.25 * LOG2E)}, 1.0\ns_cselect_b32 s48, 0, 12',
            f'v_mul_f32 v{vA_}, s47, v{vA_}',
            f'v_lshrrev_b32 v{vo}, 1, v{vL}', f'v_xor_b32 v{vo}, v{vo}, v{vL}', f'v_bfe_i32 v{vo}, v{vo}, 2, 1', f'v_and_b32 v{vo}, s48, v{vo}',
            f'v_xor_b32 v{vo}, v{vo}, v{vL}', f'v_lshlrev_b32 v{vo}, 4, v{vo}']
    merge(slots[:64], pre, start=4 if first else 8, per=2)
    e(mm(2, EW[2], EX, 1)); e(mm(0, EW[0], EX, 1))
    fill = []
    if first:
        barrier()
        fill += bcast_issue(EW[0])
    lstamp(0)
    vg, vl = EW[2], EW[2] + 1
    fill += [f'v_and_b32 v{vg}, 15, v{vL}', f'v_lshlrev_b32 v{vg}, 4, v{vg}', f'v_lshrrev_b32 v{vl}, 5, v{vL}', f'v_lshl_add_u32 v{vg}, v{vl}, 8, v{vg}',
             f'v_bfe_u32 v{vL}, v{vL}, 4, 1', f'v_lshl_add_u32 v{vl}, v{vL}, 12, v{vg}', f'v_lshl_add_u32 v{vg}, v{vL}, 16, v{vg}']
    if first: fill += bcast_take(EW[0])
    acc = ACC + 32
    for half in (0, 8):
        fill += [f'v_mul_f32 v{acc + half + r}, v{T + half + r}, v{acc + half + r}' for r in range(8)] + cvt_half(acc + half)
    fill += [f'buffer_store_dwordx4 {vr(acc + half)}, v{vg}, {SWS}, s54 offen offset:{64 * half} sc1' for half in (0, 8)]
    fill.append(lambda acc=acc: store_act([f'buffer_store_dwordx4 {vr(acc + half)}, v{vl}, {SWS}, s46 offen offset:{64 * half}' for half in (0, 8)], sQT))
    def qk_epi(j):
        acc = ACC + 16 * j; o = []
        for half in (0, 8):
            o += [f'v_mul_f32 v{acc + half + r}, v{vA_}, v{acc + half + r}' for r in range(8)] + cvt_half(acc + half)
        o.append(lambda: store_act([f'buffer_store_dwordx4 {vr(acc)}, v{vo}, {SWS}, s45 offen', 's_add_u32 s45, s45, 4096',
                                    f'buffer_store_dwordx4 {vr(acc + 8)}, v{vo}, {SWS}, s45 offen', 's_add_u32 s45, s45, 4096'], sQT))
        return o
    def k_glob(j):
        for n in range(2): g.raw(f'buffer_store_dwordx4 {vr(ACC + 16 * j + 8 * n)}, v{vo}, {SWS}, s53 offen sc1'); e('s_add_u32 s53, s53, 65536')
    def k_glob0():
        X = g.lab('QK0')
        e(f's_cmp_eq_u32 s49, 0\ns_cbranch_scc1 {X}'); k_glob(0); e(f'{X}:')
    fill += qk_epi(0) + [k_glob0]
    merge(slots[64:], fill, start=0, per=3)
    e(mm(1, EW[1], EX, 1))
    lstamp(1)
    e('s_nop 11')
    run(qk_epi(1))
    WA = g.lab('QWA'); WD = g.lab('QWD')
    e(f's_cmp_eq_u32 s49, 0\ns_cbranch_scc1 {WA}')
    k_glob(1)
    e(f's_cmp_lg_u32 {sQT}, 0\ns_cbranch_scc1 {WA}')
    g.raw('s_waitcnt vmcnt(2)')
    e(f's_branch {WD}')
    e(f'{WA}:')
    g.raw('s_waitcnt vmcnt(0)')
    e(f'{WD}:')
    e('s_setprio 0')
    lstamp(2)
    barrier()
    lstamp_flush(['qkv_k', 'qkv_t2', 'qkv_loc'])

def touch(nlines, per_wave, va, dummy):
    lane(va)
    e(f's_lshr_b32 s50, {sR}, 4\ns_lshl_b32 s51, {sG}, 1\ns_add_u32 s50, s50, s51\ns_mul_i32 s50, s50, {ARENA}\ns_and_b32 s51, {sR}, 15\ns_mul_i32 s51, s51, {nlines * 128}\ns_add_u32 s50, s50, s51\ns_add_u32 s50, s50, {AB}')
    e(f'v_lshlrev_b32 v{va}, 7, v{va}\ns_lshl_b32 s51, {sQT}, 30\ns_add_u32 s50, s50, s51')
    if per_wave:
        e(f's_mul_i32 s51, {sW}, {per_wave * 128}\ns_add_u32 s50, s50, s51\ns_mov_b32 exec_hi, {hex((1 << (per_wave - 32)) - 1)}')
        g.raw(f'buffer_load_dword v{dummy}, v{va}, {SWS}, s50 offen sc1')
        e('s_mov_b32 exec_hi, -1')
    else:
        for k in range(nlines // 64):
            g.raw(f'buffer_load_dword v{dummy}, v{va}, {SWS}, s50 offen sc1'); e('s_add_u32 s50, s50, 8192')

def qkv_phase(first):
    LH = g.lab('QH'); LD = g.lab('QD'); LE = g.lab('QE')
    g.reset_track()
    e(f's_mov_b32 {sR0}, {sR}\ns_mov_b32 {sGQ}, {sG}\ns_add_u32 {sGEP}, {sLAY}, 1')
    e(f's_cmp_ge_u32 {sW}, 4\ns_cbranch_scc1 {LH}')
    qkv_compute(first)
    e(f's_branch {LE}')
    e(f'{LH}:'); g.reset_track()
    e(f's_cmp_ge_u32 {sW}, 5\ns_cbranch_scc1 {LD}')
    if first:
        register_start(); items_issue()
        barrier()
        register_resolve()
        touch(192, 0, 9, 60)
        items_finish()
        barrier()
        e('s_waitcnt vmcnt(0)')
    else:
        arrive_local(); poll_local('half')
        barrier(); barrier()
    barrier()
    arrive_local()
    e(f's_branch {LE}')
    e(f'{LD}:'); g.reset_track()
    if first:
        qkv0_loader()
        barrier()
        barrier()
        run(bcast_issue(2) + bcast_take(2))
    else:
        dma_qkvB(0, 10); dma_qkvB(21, 27); dma_qkvB(31, 32)
        barrier()
        e('s_waitcnt vmcnt(0)')
        barrier()
    barrier()
    e(f'{LE}:'); g.reset_track()

def attention():
    S = [0, 16]; O = 32; NM = 48; Q = 64; KF = [68, 72]; V0 = [76, 80]; V1 = [84, 88]
    vK, vV, vI, vD, vL, vW1, vWO, vP, vPA, vPD, DUM = 92, 93, 94, 95, 96, 97, 98, 48, 99, 102, 100
    DONE = g.lab('ADONE')
    e(f's_mov_b32 {sRETRY}, 0')
    e(f's_mul_i32 s50, {sLAY}, 5\ns_mul_i32 s51, {sMODE}, {ASET}\ns_mul_i32 s50, s50, s51\ns_add_u32 s50, s50, {AB}')
    for r_ in (sAO, sAX1, sAH, sAX2): e(f's_add_u32 s50, s50, s51\ns_mov_b32 {r_}, s50')
    lane(vL)
    def consts():
        e(f's_cmp_lt_u32 {sW}, 4\ns_cselect_b32 s44, {ONES}, 0\ns_lshr_b32 s50, {sW}, 2\ns_lshl_b32 s50, s50, 4')
        e('v_mov_b32 v0, s44\nv_mov_b32 v1, s44\nv_mov_b32 v2, s44\nv_mov_b32 v3, s44')
        e(f'v_lshrrev_b32 v4, 4, v{vL}\ns_and_b32 s44, {sW}, 1\ns_lshl_b32 s44, s44, 2\nv_add_u32 v4, s44, v4\nv_mul_u32_u24 v4, {STG}, v4')
        e(f'v_and_b32 v5, 15, v{vL}\nv_mul_u32_u24 v5, {VP}, v5\nv_add3_u32 v4, v4, v5, s50\nds_write_b128 v4, v[0:3] offset:{KV0 + 8192 + 512}')
        e(f'v_lshlrev_b32 v{vD}, 4, v{vL}\nv_add_u32 v{vK}, {KV0}, v{vD}')
        e(f'v_and_b32 v4, 31, v{vL}\nv_lshrrev_b32 v5, 5, v{vL}\nv_lshlrev_b32 v5, 8, v5\nv_lshl_add_u32 v5, v4, 4, v5\nv_cmp_gt_u32 vcc, 16, v4')
        e(f'v_min_u32 v6, 17, v4\nv_lshl_add_u32 v6, v6, 4, 64\nv_add_u32 v6, 192, v6\nv_cndmask_b32 v{vV}, v6, v5, vcc\nv_add_u32 v{vV}, {KV0 + 8192}, v{vV}')
        for r in range(16): e(f'v_mov_b32 v{O + r}, 0')
    consts()
    e(f'v_mov_b32 v4, {BCAST + 4}\nv_mov_b32 v5, 0\nds_write_b32 v4, v5\nv_mov_b32 v{vI}, 0xdddddddd')
    e(f's_lshl_b32 s50, {sG}, 3\ns_lshr_b32 s51, {sR}, 2\ns_add_u32 s50, s50, s51\ns_lshl_b32 s50, s50, 9\ns_add_u32 s50, s50, {FL_GLB}\nv_lshl_add_u32 v{vPA}, v{vL}, 3, s50')
    addr_128(vW1, 3584); addr_128(vWO, 1024)
    e(f's_lshr_b32 s45, {sW}, 2\ns_lshl_b32 s46, {sG}, 1\ns_add_u32 s45, s45, s46\ns_mul_i32 s45, s45, {ARENA}')
    e(f's_and_b32 s46, {sW}, 3\ns_lshl_b32 s46, s46, 10\ns_lshl_b32 s47, {sR}, 12\ns_add_u32 s46, s46, s47\ns_add_u32 s46, s46, s45\ns_add_u32 s46, s46, {sAQ}')
    e(f's_lshl_b32 s44, {sR}, 16\ns_add_u32 s44, s44, {sK}\ns_lshl_b32 s47, {sW}, 10\ns_add_u32 s44, s44, s47')
    e(f's_add_u32 s48, s46, {A_K}\ns_add_u32 s49, s46, {A_V}')
    e(f's_add_u32 s67, s47, {KV0}\ns_mul_i32 s68, {sW}, {2 * VP}\ns_add_u32 s68, s68, {KV0 + 8192}')
    s_fb('s54'); e(f's_and_b32 s55, {sR}, 7\ns_lshl_b32 s55, s55, 7\ns_mov_b32 s71, 0')
    e(f's_lshr_b32 s47, {sW}, 2\ns_andn2_b32 s47, s47, {sLAY}')
    e('s_waitcnt lgkmcnt(0)')
    NG = g.lab('ANG'); NQ = g.lab('ANQ')
    gtest = f'v_min_u32 v{vPD}, v{vPD}, v{vPD+1}\nv_cmp_gt_u32 vcc, {sGEP}, v{vPD}'
    gload = f'global_load_dwordx2 v[{vPD}:{vPD+1}], v{vPA}, {WSP} sc1'
    NC = g.lab('ANC')
    e(f's_cmp_ge_u32 {sW}, 4\ns_cbranch_scc1 {NC}')
    send_global(1, 2)
    e(f's_branch {NG}\n{NC}:')
    e(f's_cmp_lg_u32 {sW}, 4\ns_cbranch_scc1 {NG}')
    e(f's_cmp_eq_u32 {sQT}, 0\ns_cbranch_scc1 {NQ}')
    bounded_poll(gload, gtest)
    e(f'{NQ}:')
    poll_local('head')
    e(f'{NG}:'); g.reset_track()
    barrier()
    stamp('att_start', 0)
    tags = []
    def kv_issue(s, tag=True):
        if s > 7: return
        f = ' sc1' if s == 0 else KVNT
        if s: e(f's_add_u32 s48, {sG}, {s}\ns_and_b32 s48, s48, 7\ns_lshl_b32 s48, s48, 13\ns_add_u32 s48, s48, s44\ns_add_u32 s49, s48, {2 * MB}')
        e(f's_mov_b32 m0, s67\ns_add_u32 s67, s67, {STG}')
        e(f'buffer_load_dwordx4 v{vD}, {SWS}, s48 offen{f} lds')
        e(f's_mov_b32 exec_hi, 0\ns_mov_b32 m0, s68\ns_nop 0')
        e(f'buffer_load_dwordx4 v{vD}, {SWS}, s49 offen{f} lds')
        e(f's_add_u32 m0, s68, {VP - 512}\ns_add_u32 s68, s68, {STG}')
        e(f'buffer_load_dwordx4 v{vD}, {SWS}, s49 offen offset:512{f} lds')
        e('s_mov_b32 exec_hi, -1')
        if tag: tags.extend([s, s, s])
    e(f'buffer_load_dwordx4 {vr(Q)}, v{vD}, {SWS}, s46 offen sc1')
    kv_issue(0)
    base = {'K': 0, 'V': 0}
    def landed(s):
        yo = tags[max(i for i, x in enumerate(tags) if x == s) + 1:]
        n = len([x for x in yo if x > -2])
        assert not (-2 in yo and -3 in yo)
        if n == len(yo): g.force_wait(f'vmcnt({n})')
        else:
            A = g.lab('ALA'); B = g.lab('ALB')
            e(f's_cmp_lg_u32 s47, 0\ns_cbranch_scc1 {A}' if -2 in yo else f's_cmp_lt_u32 {sW}, 4\ns_cbranch_scc1 {A}')
            g.force_wait(f'vmcnt({n})')
            e(f's_branch {B}\n{A}:')
            g.raw(f's_waitcnt vmcnt({len(yo)})')
            e(f'{B}:')
        barrier()
    def kread(t):
        if t > 63: return []
        off = (t // 8) * STG + (t % 8) * 1024 - base['K']
        return [f'ds_read_b128 {vr(KF[t & 1])}, v{vK} offset:{off}']
    def vread(t, half):
        if t > 63: return []
        off = (t // 8) * STG + (2 * (t % 8) + half) * VP - base['V']
        return [f'ds_read_b128 {vr((V0, V1)[half][t & 1])}, v{vV} offset:{off}']
    def qk(t): return f'v_mfma_f32_32x32x16_bf16 {vr(S[t & 1], 16)}, {vr(KF[t & 1])}, {vr(Q)}, 0'
    def pv(t, half): return f'v_smfmac_f32_32x32x32_bf16 {vr(O, 16)}, {vr((V0, V1)[half][t & 1])}, {vr(S[t & 1] + 8 * half, 8)}, v{vI}'
    def attempt(final):
        SK = g.lab('APS'); RT = g.lab('APR')
        e(f's_cmp_lg_u32 s71, 0\ns_cbranch_scc1 {SK}')
        if final: bounded_poll(gload, gtest)
        else:
            g.raw('s_waitcnt vmcnt(0)')
            for x in gtest.split('\n'): g.raw(x)
            g.raw('s_nop 0'); e(f's_cbranch_vccnz {RT}')
        kv_issue(1, False); kv_issue(2, False)
        e('s_mov_b32 s71, 1')
        if not final:
            e(f's_branch {SK}')
            e(f'{RT}:')
            g.raw(gload)
        e(f'{SK}:')
        g.vm = []
    def w1_pref(n):
        e(f's_add_u32 s50, {sW}, {n}'); w1_instr('s50', vW1, 's54'); tags.append(-1)
    def wo_pref(k):
        e(f's_lshl_b32 s51, {sW}, 10\ns_add_u32 m0, s51, {8192 * k}\ns_lshl_b32 s50, {sW}, 13\ns_add_u32 s50, s50, s55\ns_add_u32 s50, s50, {65536 * k}')
        e(f'buffer_load_dwordx4 v{vWO}, {SWO}, s50 offen lds'); tags.append(-1)
    def warm(srd, share, shift, stride, colreg, cut, add, lowcol):
        e(f's_lshr_b32 s50, {sR}, {shift}\ns_mul_i32 s50, s50, {share}\ns_mul_i32 s51, {sW}, {share // 8}\ns_add_u32 s50, s50, s51\nv_add_u32 v{vP}, s50, v{vL}')
        e(f'v_cmp_gt_u32 vcc, {cut}, v{vP}\nv_mul_u32_u24 v{vP}, {stride}, v{vP}\nv_add_u32 v{vP+1}, {add * stride}, v{vP}\nv_add_u32 v{vP}, {lowcol}, v{vP}\nv_cndmask_b32 v{vP}, v{vP+1}, v{vP}, vcc')
        m = (1 << (share // 8)) - 1
        e(f's_mov_b32 exec_lo, {hex(m & 0xffffffff)}\ns_mov_b32 exec_hi, {hex(m >> 32)}')
        g.raw(f'buffer_load_dword v{DUM}, v{vP}, {srd}, {colreg} offen'); tags.append(-1)
        e('s_mov_b64 exec, -1')
    def w2_part(m0_, m1_):
        X = g.lab('AW2')
        e(f's_cmp_eq_u32 s47, 0\ns_cbranch_scc1 {X}')
        e(f's_and_b32 s50, {sW}, 1\ns_mul_i32 s50, s50, 896\ns_bfe_u32 s51, {sW}, 0x10001\ns_lshl_b32 s51, s51, 3\ns_add_u32 s50, s50, s51\ns_add_u32 s50, s50, {368 + 16 * m0_}\ns_lshl_b32 s50, s50, 10\ns_add_u32 s50, s50, s55')
        for m in range(m0_, m1_):
            g.raw(f'buffer_load_dwordx4 {vr(WR + 4 * m)}, v{vWO}, {SW2}, s50 offen'); e('s_add_u32 s50, s50, 16384'); tags.append(-2)
        e(f'{X}:')
    def r_part(m0_, m1_):
        X = g.lab('ARP')
        e(f's_cmp_ge_u32 {sW}, 4\ns_cbranch_scc1 {X}')
        e(f's_add_u32 s50, {sW}, {4 * m0_}\ns_mul_i32 s50, s50, 28672\ns_add_u32 s50, s50, s54\ns_add_u32 s50, s50, 128')
        for m in range(m0_, m1_):
            g.raw(f'buffer_load_dwordx4 {vr(RQ[m])}, v{vW1}, {SW1}, s50 offen'); e(f's_add_u32 s50, s50, {4 * 28672}'); tags.append(-3)
        e(f'{X}:')
    jobs = {}
    def job(t, f): jobs.setdefault(t, []).append(f)
    for k in range(11): job(8 + (19 * k) // 10, lambda k=k: w2_part(3 * k, 3 * k + 3))
    for t in (10, 26, 42, 56): job(t, lambda: (touch(328, 41, vP, DUM), tags.append(-1)))
    for k in range(8): job(29 + k, lambda k=k: wo_pref(k))
    for t, n in ((37, 50), (45, 58), (46, 66), (53, 74), (54, 82), (60, 90), (61, 98)): job(t, lambda n=n: w1_pref(n))
    job(39, lambda: warm(SW1, 88, 4, 3584, 's54', 0, 336, 0))
    for k, (a, b) in enumerate(((0, 3), (3, 6), (6, 9), (9, 11), (11, 13))): job(38 + 2 * k, lambda a=a, b=b: r_part(a, b))
    job(48, lambda: warm(SW2, 184, 3, 1024, 's55', 368, 528, 0))
    landed(0)
    lstamp(0)
    run(kread(0) + vread(0, 0) + vread(0, 1) + kread(1) + vread(1, 0))
    g.vm = []
    g.raw(gload)
    e(qk(0))
    run(kread(2))
    e('s_nop 10')
    for t in range(64):
        s0 = S[t & 1]
        ex = [f'v_exp_f32 v{s0 + r}, v{s0 + r}' for r in range(16)]
        e(ex[0]); e(ex[1])
        if t: e(pv(t - 1, 1))
        if 1 <= t <= 6:
            attempt(t == 6)
            if t == 6: tags.extend([1, 1, 1, 2, 2, 2])
        if t == 7:
            landed(1); lstamp(1)
            run(kread(8) + vread(8, 0) + kread(9))
        run(vread(t + 1, 1))
        if t == 7: kv_issue(3)
        if t % 8 == 4 and t > 8:
            s = t // 8 + 1
            if s <= 7: landed(s)
            else: barrier()
            lstamp(s)
            kv_issue(s + 2)
        g.wait_for(vr(KF[(t + 1) & 1]), vr(V0[t & 1]))
        run(ex[2:5])
        if t < 63: e(qk(t + 1))
        if t % 8 == 5 and (t // 8) in (2, 5):
            e(f'v_add_u32 v{vK}, {3 * STG}, v{vK}'); base['K'] += 3 * STG
        if t not in (5, 6): run(kread(t + 3))
        run(jobs.get(t, []))
        run(ex[5:10])
        e(pv(t, 0))
        if t % 8 == 6 and (t // 8) in (2, 5):
            e(f'v_add_u32 v{vV}, {3 * STG}, v{vV}'); base['V'] += 3 * STG
        if t != 6: run(vread(t + 2, 0))
        g.wait_for(vr(V1[t & 1]))
        run(ex[10:16])
    e('s_nop 1')
    e(pv(63, 1))
    stamp('att_loop', 0)
    lstamp_flush([f'att_b{i}' for i in range(9)])
    EPI = g.lab('AEPI')
    e(f'{EPI}:')
    e(f's_and_b32 s46, {sW}, 3\ns_lshl_b32 s46, s46, 15\ns_lshl_b32 s47, {sR}, 10\ns_add_u32 s46, s46, s47\ns_add_u32 s46, s46, s45\ns_add_u32 s46, s46, {sAO}\ns_add_u32 s46, s46, {A_O}')
    e(f'v_mov_b32 v1, {fl(2.0**-30)}\nv_mov_b32 v2, {fl(2.0**64)}\nv_mov_b32 v3, 0x207')
    e('s_nop 3')
    e(f'v_mov_b32 v{O + 9}, v{O + 8}\ns_nop 1\nv_permlane32_swap_b32 v{O + 8}, v{O + 9}\nv_rcp_f32 v0, v{O + 8}')
    e(f'v_cmp_nle_f32 s[50:51], v1, v{O + 8}\nv_cmp_nge_f32 vcc, v2, v{O + 8}\ns_nop 0\ns_or_b64 s[50:51], s[50:51], vcc')
    for r in range(8):
        e(f'v_cmp_class_f32 vcc, v{O + r}, v3\nv_mul_f32 v{O + r}, v0, v{O + r}\ns_or_b64 s[50:51], s[50:51], vcc')
    run(cvt_half(O))
    store_act([f'buffer_store_dwordx4 {vr(O)}, v{vD}, {SWS}, s46 offen'])
    NB = g.lab('ANB')
    if FORCE_SLOW: e('s_mov_b64 s[50:51], -1')
    e(f's_cmp_eq_u64 s[50:51], 0\ns_cbranch_scc1 {NB}')
    e(f'v_mov_b32 v4, {BCAST + 4}\nv_mov_b32 v5, 1\nds_write_b32 v4, v5')
    e(f'{NB}:')
    e('s_waitcnt vmcnt(0) lgkmcnt(0)')
    barrier()
    e(f'v_mov_b32 v4, {BCAST + 4}\nds_read_b32 v5, v4\ns_waitcnt lgkmcnt(0)\nv_readfirstlane_b32 s50, v5\ns_nop 0')
    e(f's_andn2_b32 s50, s50, {sRETRY}\ns_cmp_eq_u32 s50, 0\ns_cbranch_scc1 {DONE}')
    e(f's_mov_b32 {sRETRY}, 1')
    consts()
    e(f's_lshl_b32 s44, {sR}, 16\ns_add_u32 s44, s44, {sK}\ns_lshl_b32 s47, {sW}, 10\ns_add_u32 s48, s44, s47\ns_add_u32 s49, s48, {2 * MB}')
    e(f's_add_u32 s67, s47, {KV0}\ns_mul_i32 s68, {sW}, {2 * VP}\ns_add_u32 s68, s68, {KV0 + 8192}')
    for k in range(8):
        kv_issue(0, False); e('s_add_u32 s48, s48, 8192\ns_add_u32 s49, s49, 8192')
    e('s_waitcnt vmcnt(0) lgkmcnt(0)')
    barrier()
    e(f'v_mov_b32 v{NM}, 0xff800000')
    for ps in range(2):
        L = g.lab('AMX'); L2 = g.lab('AMY')
        e('s_mov_b32 s50, 0')
        e(f'v_mov_b32 v100, v{vK}\nv_mov_b32 v101, v{vV}')
        e(f'{L}:')
        e(f'ds_read_b128 {vr(KF[0])}, v100\nds_read_b128 {vr(V0[0])}, v101\nds_read_b128 {vr(V1[0])}, v101 offset:{VP}')
        e(f's_add_u32 s50, s50, 1\ns_and_b32 s51, s50, 7\ns_cmp_eq_u32 s51, 0\ns_cselect_b32 s51, {16 * VP}, 0\ns_cselect_b32 s52, 8192, 0')
        e(f'v_add3_u32 v100, v100, s51, 64\nv_add_u32 v100, 960, v100\nv_add_u32 v101, s52, v101\nv_add_u32 v101, {2 * VP}, v101\ns_waitcnt lgkmcnt(0)')
        e(f'v_mfma_f32_32x32x16_bf16 {vr(S[0], 16)}, {vr(KF[0])}, {vr(Q)}, {vr(NM, 16) if ps else 0}\ns_nop 12')
        if ps == 0:
            for r in range(0, 16, 2): e(f'v_max3_f32 v{NM}, v{NM}, v{r}, v{r + 1}')
        else:
            for r in range(16): e(f'v_exp_f32 v{r}, v{r}')
            e('s_nop 1'); e(pv(0, 0)); e(pv(0, 1))
        e(f's_cmp_lt_u32 s50, 64\ns_cbranch_scc1 {L}')
        if ps == 0:
            e(f'v_mov_b32 v{NM+1}, v{NM}\ns_nop 1\nv_permlane32_swap_b32 v{NM}, v{NM+1}\nv_max_f32 v{NM}, v{NM}, v{NM+1}\nv_sub_f32 v{NM}, 0, v{NM}')
            for r in range(1, 16): e(f'v_mov_b32 v{NM + r}, v{NM}')
    barrier()
    for k in range(8): wo_pref(k)
    for n in range(50, 106, 8): w1_pref(n)
    e(f's_branch {EPI}')
    e(f'{DONE}:'); g.reset_track()

def proj_compute(kind):
    A = 0; ACC = 128; BR = 176; vB = 208; vL = 214; T = 216
    wo = kind == 'wo'
    NS = 16 if wo else 56
    e('s_setprio 1')
    lane(vL)
    e(f's_lshr_b32 s44, {sR}, 3\ns_lshl_b32 s44, s44, 1\ns_lshl_b32 s45, {sG}, 3\ns_add_u32 s44, s44, s45\ns_and_b32 s45, {sW}, 1\ns_add_u32 s44, s44, s45')
    e(f's_lshr_b32 s45, {sW}, 1\ns_and_b32 s47, {sR}, 7\ns_lshl_b32 s47, s47, 1\ns_add_u32 s47, s47, s45')
    e(f'v_lshlrev_b32 v{T}, 4, v{vL}')
    e(f's_lshr_b32 s71, s44, 2\ns_mul_i32 s71, s71, {ARENA}\ns_and_b32 s53, s44, 3')
    if wo: e(f's_lshl_b32 s46, s53, 15\ns_lshl_b32 s48, s45, 14\ns_add_u32 s46, s46, s48\ns_add_u32 s46, s46, {sAO}\ns_add_u32 s46, s46, {A_O}')
    else: e(f's_mul_i32 s46, s53, {112 * 1024}\ns_mul_i32 s48, s45, {56 * 1024}\ns_add_u32 s46, s46, s48\ns_add_u32 s46, s46, {sAH}')
    e('s_add_u32 s46, s46, s71')
    if wo:
        N1 = g.lab('WOR')
        e(f's_cmp_lg_u32 {sLAY}, 0\ns_cbranch_scc1 {N1}')
        e(f'v_and_b32 v{T+1}, 31, v{vL}\nv_lshrrev_b32 v{T+2}, 5, v{vL}\nv_lshlrev_b32 v{T+1}, 10, v{T+1}\nv_lshl_add_u32 v{T+1}, v{T+2}, 3, v{T+1}')
        e('s_lshl_b32 s48, s44, 15\ns_lshl_b32 s49, s47, 6\ns_add_u32 s48, s48, s49')
        for q in range(4): e(f'buffer_load_dwordx2 v[{RES + 2*q}:{RES + 2*q + 1}], v{T+1}, {SX}, s48 offen offset:{16 * q}')
        e('s_waitcnt vmcnt(0)')
        e(f'{N1}:')
    for k in range(8): e(f'v_lshlrev_b32 v{ACC + 2*k}, 16, v{RES + k}\nv_and_b32 v{ACC + 2*k + 1}, 0xffff0000, v{RES + k}')
    tr_lane_parts(vL, T + 4)
    h_ = T + 6
    tr128(vB, T + 4, 's45')
    if wo: e(f's_lshl_b32 s48, s45, 15\nv_add_u32 v{vB}, s48, v{vB}\nv_add_u32 v{vB+1}, s48, v{vB+1}')
    else:
        e(f's_lshl_b32 s48, s45, 15\ns_add_u32 s49, s48, {W2Y}\nv_add_u32 v{vB+2}, s49, v{vB}\nv_add_u32 v{vB+3}, s49, v{vB+1}')
        e(f's_add_u32 s49, s48, {W2Z}\nv_add_u32 v{vB+4}, s49, v{vB}\nv_add_u32 v{vB+5}, s49, v{vB+1}')
        e(f's_mul_i32 s48, s45, 14336\nv_add_u32 v{vB}, s48, v{vB}\nv_add_u32 v{vB+1}, s48, v{vB+1}')
    e(f's_lshl_b32 s48, {sW}, 12\ns_add_u32 s48, s48, {RED}\nv_add_u32 v{T+1}, s48, v{T}\ns_xor_b32 s48, s48, 8192\nv_add_u32 v{T+2}, s48, v{T}')
    barrier()
    stamp(kind + '_start', 0)
    al = ALoader(A, 0, 's46', NS, vaddr=T)
    al.issue(AINIT)
    nfr = [0]; regs = {}
    def where(ks):
        if wo or ks < 7: return 0, ks
        if ks < 23: return 2, ks - 7
        if ks < 39: return 4, ks - 23
        if ks < 46: return 0, ks - 39
        return 2, ks - 46
    def issue(n):
        ks, j = divmod(n, 2)
        if ks >= NS: return
        if not wo and j == 0 and ks in (17, 39):
            e('s_waitcnt lgkmcnt(0)'); barrier()
        b = BR + 4 * (nfr[0] % 8); nfr[0] += 1; regs[n] = b
        a, slot = where(ks)
        e(trrd(b, vB + a + j, slot * 2048, 1024))
    AH = 6
    for n in range(AH): issue(n)
    for n in range(2 * NS):
        ks, j = divmod(n, 2)
        acc = ACC + 16 * j
        li = 2 * NS - 2
        if n >= li: j = 1 - j; acc = ACC + 16 * j
        c = '0' if (ks == 0 and j == 1) else vr(acc, 16)
        e(f'v_mfma_f32_32x32x16_bf16 {vr(acc,16)}, {vr(regs[2 * ks + j])}, {vr(A + 4 * (ks % 32))}, {c}')
        issue(n + AH)
        if al.k < NS and n & 1:
            al.issue(1)
            if wo and al.k == NS: barrier()
    stamp(kind + '_loop', 0)
    e(f's_add_u32 s71, s71, {sAX1 if wo else sAX2}')
    e(f's_lshl_b32 s46, s53, 15\ns_lshl_b32 s48, s47, 11\ns_add_u32 s46, s46, s48\ns_add_u32 s46, s46, s71\ns_add_u32 s46, s46, {A_X}')
    e(f's_lshl_b32 s49, s53, 12\ns_lshl_b32 s48, s47, 8\ns_add_u32 s49, s49, s48\ns_add_u32 s49, s49, s71\ns_add_u32 s49, s49, {A_ST}')
    for q in range(4): e(f'ds_write_b128 v{T+1}, {vr(ACC + 16 + 4*q)} offset:{1024 * q}')
    for k in range(4): e(f'v_mov_b32 v{T+8+k}, 0')
    e(f'v_lshlrev_b32 v{T+1}, 2, v{vL}')
    e('s_waitcnt lgkmcnt(0)')
    barrier()
    for q in range(4): e(f'ds_read_b128 {vr(ACC + 16 + 4*q)}, v{T+2} offset:{1024 * q}')
    for q in range(4):
        for r in range(4 * q, 4 * q + 4): e(f'v_add_f32 v{ACC + r}, v{ACC + r}, v{ACC + 16 + r}')
        for k in range(2 * q, 2 * q + 2): e(f'v_cvt_pk_bf16_f32 v{RES + k}, v{ACC + 2*k}, v{ACC + 2*k + 1}')
    def act_out():
        store_act([f'buffer_store_dwordx4 {vr(RES)}, v{T}, {SWS}, s46 offen', f'buffer_store_dwordx4 {vr(RES + 4)}, v{T}, {SWS}, s46 offen offset:1024'])
        for k in range(8): e(f'v_dot2c_f32_bf16 v{T+8+(k&1)}, {ONES}, v{RES + k}\nv_dot2c_f32_bf16 v{T+10+(k&1)}, v{RES + k}, v{RES + k}')
        e(f's_nop 2\nv_add_f32 v{T+8}, v{T+8}, v{T+9}\nv_add_f32 v{T+10}, v{T+10}, v{T+11}\ns_nop 1')
        e(f'v_permlane32_swap_b32 v{T+8}, v{T+10}\nv_add_f32 v{T+8}, v{T+8}, v{T+10}')
        store_act([f'buffer_store_dword v{T+8}, v{T+1}, {SWS}, s49 offen'])
    if wo: act_out()
    else:
        F = g.lab('W2F'); D = g.lab('W2D')
        e(f's_cmp_lg_u32 {sLAY}, 0\ns_cbranch_scc1 {F}')
        act_out()
        e(f's_branch {D}')
        e(f'{F}:')
        e(f'v_and_b32 v{T+1}, 31, v{vL}\nv_lshlrev_b32 v{T+1}, 10, v{T+1}\nv_lshl_add_u32 v{T+1}, v{h_}, 4, v{T+1}')
        e('s_lshl_b32 s46, s44, 15\ns_lshl_b32 s48, s47, 6\ns_add_u32 s46, s46, s48')
        e(f'v_permlane32_swap_b32 v{RES}, v{RES+2}\nv_permlane32_swap_b32 v{RES+1}, v{RES+3}\nv_permlane32_swap_b32 v{RES+4}, v{RES+6}\nv_permlane32_swap_b32 v{RES+5}, v{RES+7}')
        e(f'buffer_store_dwordx4 {vr(RES)}, v{T+1}, {SOUT}, s46 offen\nbuffer_store_dwordx4 {vr(RES+4)}, v{T+1}, {SOUT}, s46 offen offset:32')
        e(f'{D}:')
    stamp(kind + '_st', 0)
    e('s_setprio 0')
    if wo:
        e(f's_lshl_b32 s48, {sW}, 10\ns_add_u32 s48, s48, {W1R}\nv_add_u32 v{T+3}, s48, v{T}')
        for m in range(8): e(f'ds_write_b128 v{T+3}, {vr(RQ[m])} offset:{4096 * m}')
    e('s_waitcnt vmcnt(0)')
    barrier()
    if wo:
        X = g.lab('WRX')
        for m in range(8, 12): e(f'ds_write_b128 v{T+3}, {vr(RQ[m])} offset:{4096 * m}')
        e(f's_cmp_ge_u32 {sW}, 2\ns_cbranch_scc1 {X}')
        e(f'ds_write_b128 v{T+3}, {vr(RQ[12])} offset:{4096 * 12}')
        e(f'{X}:')
        e('s_waitcnt lgkmcnt(0)')

def wo_phase():
    LH = g.lab('OH'); LD = g.lab('OD'); LE = g.lab('OE')
    e(f's_cmp_ge_u32 {sW}, 4\ns_cbranch_scc1 {LH}')
    proj_compute('wo')
    e(f's_branch {LE}')
    e(f'{LH}:'); g.reset_track()
    e(f's_cmp_ge_u32 {sW}, 5\ns_cbranch_scc1 {LD}')
    arrive_local(); poll_local('all')
    barrier(); barrier(); barrier(); barrier()
    e(f's_branch {LE}')
    e(f'{LD}:'); g.reset_track()
    tables_build()
    barrier()
    barrier()
    dma_w1(106, 128)
    barrier()
    e('s_waitcnt vmcnt(0)')
    barrier()
    e(f'{LE}:'); g.reset_track()

def w2_phase():
    LH = g.lab('TH'); LD = g.lab('TD'); LE = g.lab('TE'); N = g.lab('TN'); J = g.lab('TJ')
    e(f's_cmp_ge_u32 {sW}, 4\ns_cbranch_scc1 {LH}')
    proj_compute('w2')
    e(f's_branch {LE}')
    e(f'{LH}:'); g.reset_track()
    e(f's_cmp_ge_u32 {sW}, 5\ns_cbranch_scc1 {J}')
    arrive_local(); poll_local('half')
    e(f'{J}:')
    barrier()
    barrier()
    w2_regs_put('S')
    barrier()
    e(f's_cmp_lg_u32 {sLAY}, 0\ns_cbranch_scc1 {N}\ns_cmp_eq_u32 {sW}, 4\ns_cbranch_scc1 {N}')
    addr_qkvB(sR); dma_qkvB(10, 21); dma_qkvB(27, 31)
    e(f'{N}:')
    barrier()
    barrier()
    e(f'{LE}:'); g.reset_track()

def w1_compute():
    A = 0; ACC = 128; BR = 192; vB = 216; vL = 224; vA_, vA2, vo = 225, 226, 227; T = 228; EX = 232; EW = [236, 240]
    IDLE = g.lab('W1I'); END = g.lab('W1E')
    lane(vL)
    e(f's_and_b32 s47, {sR}, 15\ns_cmp_ge_u32 s47, 14\ns_cbranch_scc1 {IDLE}')
    e('s_setprio 1')
    e(f's_lshr_b32 s44, {sR}, 4\ns_lshl_b32 s45, {sG}, 1\ns_add_u32 s44, s44, s45\ns_mul_i32 s44, s44, {ARENA}')
    e(f'v_lshlrev_b32 v244, 2, v{vL}\nv_lshlrev_b32 v{vo}, 4, v{vL}')
    e(f's_add_u32 s55, s44, {sAX1}\ns_lshl_b32 s45, {sW}, 12\ns_add_u32 s45, s45, s55\ns_add_u32 s45, s45, {A_ST}\ns_lshl_b32 s48, {sW}, 15\ns_add_u32 s55, s55, s48\ns_add_u32 s55, s55, {A_X}')
    tr_lane_parts(vL, T); tr128(vB, T, 0)
    for k in range(2):
        e(f'v_add_u32 v{vB+2+k}, {W1R}, v{vB+k}\nv_add_u32 v{vB+6+k}, {W1R + 32768}, v{vB+k}\nv_add_u32 v{vB+4+k}, {W1P + 32768}, v{vB+k}\nv_add_u32 v{vB+k}, {W1P}, v{vB+k}')
    e(f'v_and_b32 v245, 31, v{vL}\nv_lshlrev_b32 v245, 2, v245\nv_add_u32 v245, {CS1}, v245')
    barrier()
    stamp('w1_start', 0)
    ST = ACC + 32
    stats_load('s45', ST, 244)
    al = ALoader(A, 0, 's55', 32, vaddr=vo)
    al.issue(AINIT)
    pre = stats_reduce(ST, T, T + 1) + stats_finish(T, T + 1, vA_, EX, vL) + [f'v_mul_f32 v{vA2}, {fl(-LOG2E)}, v{vA_}']
    pre += ext_w(EW[0], 245, 0) + ext_w(EW[1], 245, 128)
    e(f's_mul_i32 s46, {sW}, {112 * 1024}\ns_lshl_b32 s48, s47, 13\ns_add_u32 s46, s46, s48\ns_add_u32 s46, s46, s44\ns_add_u32 s46, s46, {sAH}\ns_add_u32 s48, s46, 4096')
    seq = [(ks, j) for ks in range(32) for j in range(2)] + [(ks, 2) for ks in range(32)] + [(ks, 3) for ks in range(32)]
    regs = {}; nfr = [0]; AH = 5
    def issue(n):
        if n >= len(seq): return
        if n == 64:
            e('s_waitcnt lgkmcnt(0)'); barrier()
        ks, j = seq[n]
        b = BR + 4 * (nfr[0] % 6); nfr[0] += 1; regs[n] = b
        e(trrd(b, vB + j + 4 * (ks // 16), (ks % 16) * 2048, 1024))
    for n in range(AH): issue(n)
    def mm(j, w, x, c):
        acc = ACC + 16 * j
        return f'v_mfma_f32_32x32x16_bf16 {vr(acc,16)}, {vr(w)}, {vr(x)}, {vr(acc,16) if c else 0}'
    slots = []
    for n, (ks, j) in enumerate(seq):
        def mf(n=n, ks=ks, j=j):
            e(mm(j, regs[n], A + 4 * ks, ks)); issue(n + AH)
            if al.k < 32 and n & 1:
                al.issue(1)
                if al.k == 32: barrier()
        slots.append([mf])
    def epi(j):
        acc = ACC + 16 * j; o = []
        for q in range(4):
            R = [acc + 4 * q + k for k in range(4)]
            for k in range(4): o.append(f'v_mul_f32 v{T + k}, v{vA2}, v{R[k]}')
            for k in range(4): o += [f'v_exp_f32 v{T + k}, v{T + k}', f'v_mul_f32 v{R[k]}, v{vA_}, v{R[k]}']
            for k in range(4): o.append(f'v_add_f32 v{T + k}, 1.0, v{T + k}')
            for k in range(4): o.append(f'v_rcp_f32 v{T + k}, v{T + k}')
            for k in range(4): o.append(f'v_mul_f32 v{R[k]}, v{R[k]}, v{T + k}')
            if q & 1: o += cvt_half(acc + 8 * (q >> 1))
        so = 's46' if j < 2 else 's48'
        o.append(lambda: store_act([f'buffer_store_dwordx4 {vr(acc)}, v{vo}, {SWS}, {so} offen offset:{2048 * (j & 1)}',
                                    f'buffer_store_dwordx4 {vr(acc + 8)}, v{vo}, {SWS}, {so} offen offset:{2048 * (j & 1) + 1024}']))
        return o
    merge(slots[:64], pre, start=8, per=2)
    e(mm(0, EW[0], EX, 1)); e(mm(1, EW[1], EX, 1))
    lstamp(0)
    f01 = ext_w(EW[0], 245, 256) + ext_w(EW[1], 245, 384) + epi(0) + epi(1); f2 = epi(2)
    cut = (len(f01) + len(f2)) // 2
    merge(slots[64:96], f01[:cut], start=0)
    e(mm(2, EW[0], EX, 1))
    lstamp(1)
    merge(slots[96:128], f01[cut:] + f2, start=0)
    e(mm(3, EW[1], EX, 1))
    barrier()
    stamp('w1_loop', 0)
    e('s_nop 10')
    run(epi(3))
    stamp('w1_st', 0)
    lstamp_flush(['w1_k', 'w1_t2'])
    e('s_setprio 0')
    e('s_waitcnt vmcnt(0)')
    barrier()
    e(f's_branch {END}')
    e(f'{IDLE}:')
    for _ in range(5): barrier()
    e(f'{END}:')

def w1_phase():
    LH = g.lab('UH'); LD = g.lab('UD'); LE = g.lab('UE'); J = g.lab('UJ'); N = g.lab('UN')
    e(f's_cmp_ge_u32 {sW}, 4\ns_cbranch_scc1 {LH}')
    w1_compute()
    e(f's_branch {LE}')
    e(f'{LH}:'); g.reset_track()
    e(f's_cmp_ge_u32 {sW}, 5\ns_cbranch_scc1 {LD}')
    arrive_local(); poll_local('half')
    barrier(); barrier(); barrier()
    e(f's_branch {J}')
    e(f'{LD}:'); g.reset_track()
    barrier()
    barrier()
    dma_w2('X')
    barrier()
    dma_w2('Y')
    e(f's_cmp_lg_u32 {sLAY}, 0\ns_cbranch_scc1 {N}')
    s_qkv_cols(sR); lane(9)
    e(f's_lshr_b32 s50, {sR}, 4\ns_lshl_b32 s50, s50, 8\nv_add_u32 v9, s50, v9\nv_mul_u32_u24 v9, 3072, v9\ns_sub_u32 s56, {sW}, 5')
    def body():
        e(f's_and_b32 s50, s52, 3\ns_mul_i32 s50, s50, {64 * 3072}\ns_cmp_lt_u32 s52, 4\ns_cselect_b32 s51, s53, s54\ns_add_u32 s50, s50, s51')
        e(f'buffer_load_dword v60, v9, {SWQ}, s50 offen')
        g.vm = []
    dma_loop(8, 's56', 3, body)
    e(f'{N}:')
    e(f'{J}:')
    barrier()
    w2_regs_put('Z')
    e('s_waitcnt vmcnt(0)')
    barrier()
    e(f'{LE}:'); g.reset_track()

def main():
    K = NAME + '_kernel'
    e(f'{K}:')
    e('s_cmp_ge_u32 s2, 256\ns_cbranch_scc1 L_END')
    e('s_load_dwordx4 s[44:47], s[0:1], 0\ns_load_dwordx2 s[48:49], s[0:1], 16\ns_load_dwordx4 s[52:55], s[0:1], 32')
    e('s_load_dwordx2 s[56:57], s[0:1], 48\ns_load_dwordx2 s[32:33], s[0:1], 56\ns_load_dwordx2 s[34:35], s[0:1], 64')
    e(f'v_lshrrev_b32 v1, 6, v0\ns_and_b32 {sG}, s2, 7\ns_lshr_b32 {sR}, s2, 3\nv_readfirstlane_b32 {sW}, v1')
    e(f's_mov_b32 {sMODE}, 1\ns_mov_b32 {sQT}, 1\ns_mov_b32 {sLAY}, 0\ns_mov_b32 {sEP}, 0\ns_mov_b32 {sGEP}, 0')
    e(f's_mov_b32 {sK}, {KB[0]}\ns_mov_b32 {sAQ}, {AB}')
    e('s_waitcnt lgkmcnt(0)')
    for base, src, size in ((4, 44, 2 * MB), (8, 46, 512 * 3072), (12, 48, 512 * 1024), (16, 52, 512 * 3584), (20, 54, 1792 * 1024), (24, 56, 2 * MB), (28, 34, WS_SIZE)):
        e(f's_mov_b32 s{base}, s{src}\ns_mov_b32 s{base+1}, s{src+1}\ns_mov_b32 s{base+2}, {size}\ns_mov_b32 s{base+3}, 0x20000')
    stamp('begin', 0)
    qkv_phase(True)
    e('L_LAYER:')
    attention()
    if STOP == 'att': e('s_endpgm')
    wo_phase()
    if STOP == 'wo': e('s_waitcnt vmcnt(0)\ns_endpgm')
    w1_phase()
    if STOP == 'w1': e('s_waitcnt vmcnt(0)\ns_endpgm')
    w2_phase()
    e(f's_cmp_lg_u32 {sLAY}, 0\ns_cbranch_scc1 L_END')
    if STOP == 'w2': e('s_waitcnt vmcnt(0)\ns_endpgm')
    e(f's_mov_b32 {sLAY}, 1\ns_mov_b32 {sQT}, {sMODE}')
    e(f's_mov_b32 {sK}, {KB[1]}\ns_mul_i32 {sAQ}, {sMODE}, {5 * ASET}\ns_add_u32 {sAQ}, {sAQ}, {AB}')
    qkv_phase(False)
    e('s_branch L_LAYER')
    e('L_END:')
    e('s_endpgm')
    errs = check_hazards(g.ins) + [x for x in check_waits(g.ins) if not any(f"['v{r}'" in x for r in (60, 100, 102, 103)) and not x.endswith('s[16:19], s50 offen')]
    for x in errs: print(x, file=sys.stderr)
    head = f"""; fused 2-layer (MHA + SiLU FFN) block, one persistent launch: 256 workgroups x 8 waves, one per CU
; @launch grid=(256,1,1) block=(512,1,1) lds={LDS}
.amdgcn_target "amdgcn-amd-amdhsa--gfx950"
.text
.globl {K}
.p2align 8
.type {K},@function
"""
    tail = f""".section .rodata,"a"
.p2align 6
.amdhsa_kernel {K}
  .amdhsa_next_free_vgpr 256
  .amdhsa_next_free_sgpr 96
  .amdhsa_accum_offset 256
  .amdhsa_group_segment_fixed_size 0
  .amdhsa_kernarg_size 72
  .amdhsa_user_sgpr_count 2
  .amdhsa_user_sgpr_kernarg_segment_ptr 1
  .amdhsa_system_sgpr_workgroup_id_x 1
.end_amdhsa_kernel
"""
    out = [a for a in sys.argv[1:] if not a.startswith('--')]
    open(out[0] if out else 'out.s', 'w').write(head + g.text() + tail)
    if PROF:
        import json
        json.dump([[k[0], k[1], v] for k, v in stamp_idx.items()], open('stamps.json', 'w'))
    print('instructions:', sum(1 for i in g.ins if i.op), 'errors:', len(errs), file=sys.stderr)
main()
```

```python
import sys, math, struct
from asmlib import Gen, check_hazards, check_waits

NAME = 'interleave_layers__mha_block__dense_activation_silu__prompt'
OPT = {}
for a in sys.argv[1:]:
    if a.startswith('--'):
        k, _, v = a[2:].partition('='); OPT[k] = v or True
PROF = 'prof' in OPT
STOP = OPT.get('stop')
FORCE_SAFE = 'safe' in OPT
FORCE_DYN = 'dyn' in OPT
FORCE_SLOW = 'slowattn' in OPT
KVNT = ' nt' if 'kvnt' in OPT else ''

MB = 1 << 20
FL_LOC = 0; FL_GLB = 4096; PROFB = 65536
KB = [2 * MB, 6 * MB]
ARENA = 656 * 1024; ASET = 16 * ARENA; ALINES = ARENA // (128 * 128); AB = 10 * MB
A_Q, A_K, A_V, A_O, A_X, A_ST, A_H = 0, 131072, 262144, 393216, 524288, 655360, 0
WS_SIZE = AB + 12 * ASET
LDS = 163840
SMALL = 161792
CSQ = SMALL; CS1 = SMALL + 512
BCAST = SMALL + 1536
VST = 160768
XST = 98304
CSQ3 = 147456
ITEM = 131072
VP = 544; STG = 8192 + 16 * VP; KV0 = SMALL - 8 * STG
W1R = 30720; W1P = W1R + 65536
RED = 65536
W2X, W2Y, W2Z = 0, W1P, W1R
RQ = [104, 108, 112, 116, 120, 124, 160, 164, 168, 172, 232, 236, 240]
WR = 104
SX, SWQ, SWO, SW1, SW2, SOUT, SWS = 's[4:7]', 's[8:11]', 's[12:15]', 's[16:19]', 's[20:23]', 's[24:27]', 's[28:31]'
DBG = 's[32:33]'; WSP = 's[34:35]'
sW, sG, sR, sMODE, sLAY, sEP, sGEP = 's36', 's37', 's38', 's39', 's40', 's41', 's42'
sRETRY = 's43'
sK, sAQ, sAO, sAX1, sAH, sAX2 = 's60', 's61', 's62', 's63', 's64', 's69'
sDY = 's90'; sQS = 's91'
sGQ = 's70'
sR0 = 's65'; sQT = 's66'
RES = 248
ONES = '0x3f803f80'
LOG2E = 1.4426950408889634

g = Gen()
e = g.e
def vr(a, n=4): return f'v[{a}:{a+n-1}]'
def fl(x): return hex(struct.unpack('<I', struct.pack('<f', x))[0])
def run(lst):
    for x in lst:
        if callable(x): x()
        else: e(x)
def lane(v): e(f'v_mbcnt_lo_u32_b32 v{v}, -1, 0\nv_mbcnt_hi_u32_b32 v{v}, -1, v{v}')
def barrier(): e('s_barrier')

stamp_idx = {}
def _sidx(name, role):
    key = (name, role)
    if key not in stamp_idx: stamp_idx[key] = len([k for k in stamp_idx if k[1] == role])
    assert stamp_idx[key] < 64
    return stamp_idx[key]
def _sstore(idx, role, src):
    e(f's_lshl_b32 s57, s2, 10\ns_mul_i32 s56, {sLAY}, 256\ns_add_u32 s57, s57, s56\ns_add_u32 s57, s57, {PROFB + role * 512 + idx * 4}')
    e('s_waitcnt lgkmcnt(0)')
    e(f'v_mov_b32 v246, s57\nv_mov_b32 v247, {src}')
    e(f'global_store_dword v246, v247, {WSP}')
def stamp(name, role):
    if 'tt' in OPT and name in ('begin', 'w2_st'):
        e('s_memrealtime s[58:59]'); _sstore(0 if name == 'begin' else 1, role, 's58'); return
    if not PROF: return
    e('s_memrealtime s[58:59]'); _sstore(_sidx(name, role), role, 's58')
def lstamp(i):
    if PROF: e(f's_memrealtime s[{72 + 2*i}:{73 + 2*i}]')
def lstamp_flush(names):
    if not PROF: return
    for i, n in enumerate(names): _sstore(_sidx(n, 0), 0, f's{72 + 2*i}')

def merge(slots, fill, start=0, per=None):
    n = len(slots) - start
    k = 0
    for i, s in enumerate(slots):
        run(s)
        if i >= start:
            tgt = len(fill) if i == len(slots) - 1 else (min(len(fill), (i - start + 1) * per) if per else (len(fill) * (i - start + 1)) // n)
            run(fill[k:tgt]); k = max(k, tgt)

def bounded_poll(load, test):
    L = g.lab('POLL'); X = g.lab('POLLX')
    e('s_mov_b32 s50, 0x40000')
    e(f'{L}:')
    e(load)
    e('s_waitcnt vmcnt(0)')
    e(test)
    e(f's_sub_u32 s50, s50, 1\ns_cmp_eq_u32 s50, 0\ns_cbranch_scc1 {X}')
    e(f's_cbranch_vccnz {L}')
    e(f'{X}:')

def arrive_local():
    A = g.lab('ARS'); B = g.lab('ARD')
    e(f's_add_u32 {sEP}, {sEP}, 1')
    e(f's_lshl_b32 s50, {sG}, 8\ns_lshl_b32 s51, {sR}, 2\ns_add_u32 s50, s50, s51')
    e(f'v_mov_b32 v1, s50\nv_mov_b32 v2, {sEP}')
    e('s_mov_b64 exec, 1')
    e(f's_cmp_lg_u32 {sMODE}, 0\ns_cbranch_scc1 {A}')
    e(f'global_store_dword v1, v2, {WSP} offset:{FL_LOC}')
    e(f's_branch {B}')
    e(f'{A}:')
    e(f'global_store_dword v1, v2, {WSP} offset:{FL_LOC} sc1')
    e(f'{B}:')
    e('s_mov_b64 exec, -1')

def poll_local(kind):
    lane(3)
    if kind == 'half':
        e(f'v_and_b32 v3, 15, v3\ns_and_b32 s51, {sR}, 16\ns_lshl_b32 s51, s51, 2\ns_lshl_b32 s50, {sG}, 8\ns_add_u32 s50, s50, s51')
    elif kind == 'all':
        e(f'v_and_b32 v3, 31, v3\ns_lshl_b32 s50, {sG}, 8')
    else:
        e(f'v_and_b32 v4, 1, v3\nv_and_b32 v3, 2, v3\nv_lshl_add_u32 v3, v3, 3, v4\ns_lshr_b32 s51, {sR}, 2\ns_lshl_b32 s51, s51, 3\ns_lshl_b32 s50, {sG}, 8\ns_add_u32 s50, s50, s51')
    e('v_lshl_add_u32 v3, v3, 2, s50')
    bounded_poll(f'global_load_dword v4, v3, {WSP} offset:{FL_LOC} sc1', f'v_cmp_gt_u32 vcc, {sEP}, v4')

def send_global_prep(va, vb):
    lane(va)
    e(f's_and_b32 s50, {sR0}, 15\ns_lshr_b32 s50, s50, 1\ns_lshl_b32 s50, s50, 9\ns_lshl_b32 s51, {sGQ}, 6\ns_add_u32 s50, s50, s51')
    e(f's_lshr_b32 s51, {sR0}, 4\ns_lshl_b32 s51, s51, 5\ns_add_u32 s50, s50, s51\ns_and_b32 s51, {sR0}, 1\ns_lshl_b32 s51, s51, 4\ns_add_u32 s50, s50, s51')
    e(f's_lshl_b32 s51, {sW}, 2\ns_add_u32 s50, s50, s51\ns_add_u32 s50, s50, {FL_GLB}')
    e(f'v_lshl_add_u32 v{va}, v{va}, 12, s50\nv_mov_b32 v{vb}, {sGEP}')
def send_global(va, vb, n):
    g.raw(f's_waitcnt vmcnt({n})')
    e('s_mov_b64 exec, 0xff')
    g.raw(f'global_store_dword v{va}, v{vb}, {WSP} sc1')
    e('s_mov_b64 exec, -1')

def register_start():
    e('s_getreg_b32 s44, hwreg(HW_REG_XCC_ID)\ns_and_b32 s44, s44, 15')
    e(f's_lshr_b32 s50, s2, 5\ns_lshl_b32 s50, s50, 8\ns_and_b32 s51, s2, 31\ns_lshl_b32 s51, s51, 2\ns_add_u32 s50, s50, s51')
    e(f's_lshl_b32 s51, s2, 7\ns_add_u32 s51, s51, {FL_GLB}')
    lane(2)
    e('v_mov_b32 v1, s50\nv_lshl_add_u32 v2, v2, 2, s51\nv_mov_b32 v3, 0')
    e('s_mov_b32 exec_hi, 0')
    e(f'global_store_dword v2, v3, {WSP} sc1')
    e('s_mov_b64 exec, 1')
    e(f'global_store_dword v1, v3, {WSP} offset:{FL_LOC} sc1')
    e('s_waitcnt vmcnt(0)')
    e('s_and_b32 s50, s2, 3\ns_lshl_b32 s50, s50, 3\ns_add_u32 s51, s44, 1\ns_lshl_b32 s51, s51, s50\ns_and_b32 s50, s2, 0xfc')
    e('v_mov_b32 v1, s50\nv_mov_b32 v2, s51')
    e(f'global_atomic_or v1, v2, {DBG} sc1')
    e('s_mov_b64 exec, -1')

def register_resolve():
    lane(3)
    e('v_lshlrev_b32 v5, 2, v3')
    test = ('v_and_b32 v6, 0xff, v4\nv_bfe_u32 v7, v4, 8, 8\nv_bfe_u32 v8, v4, 16, 8\nv_lshrrev_b32 v9, 24, v4\n'
            'v_min_u32 v10, v6, v7\nv_min3_u32 v10, v10, v8, v9\nv_cmp_eq_u32 vcc, 0, v10')
    bounded_poll(f'global_load_dword v4, v5, {DBG} sc1', test)
    e(f's_mov_b32 {sMODE}, {1 if FORCE_SAFE else 0}')
    for x in range(8):
        e('s_mov_b32 s52, 0')
        for b in range(4):
            e(f'v_cmp_eq_u32 vcc, {x + 1}, v{6 + b}\ns_nop 0\ns_bcnt1_i32_b64 s51, vcc\ns_add_u32 s52, s52, s51')
        e(f's_cmp_lg_u32 s52, 32\ns_cselect_b32 s51, 1, 0\ns_or_b32 {sMODE}, {sMODE}, s51')
    e('s_add_u32 s53, s44, 1\ns_mov_b32 s52, 0')
    for b in range(4):
        e(f'v_add_u32 v10, {b}, v5\nv_cmp_gt_u32 s[54:55], s2, v10\nv_cmp_eq_u32 vcc, s53, v{6 + b}\ns_nop 0\ns_and_b64 vcc, vcc, s[54:55]\ns_bcnt1_i32_b64 s51, vcc\ns_add_u32 s52, s52, s51')
    e('v_readlane_b32 s54, v4, 0\nv_readlane_b32 s55, v4, 1\nv_and_b32 v10, 1, v3\nv_cmp_eq_u32 vcc, 0, v10\nv_mov_b32 v11, s54\nv_mov_b32 v12, s55\nv_cndmask_b32 v11, v12, v11, vcc')
    e(f'v_cmp_ne_u32 vcc, v11, v4\ns_nop 0\ns_cmp_lg_u64 vcc, 0\ns_cselect_b32 {sQT}, 1, {1 if FORCE_DYN else 0}')
    e(f's_andn2_b32 s51, {sQT}, {sMODE}\ns_or_b32 {sQT}, {sQT}, {sMODE}')
    e(f's_cmp_lg_u32 s51, 0\ns_cselect_b32 {sG}, s44, {sG}\ns_cselect_b32 {sR}, s52, {sR}')
    e(f's_lshl_b32 s50, {sR}, 8\ns_lshl_b32 s51, {sMODE}, 16\ns_or_b32 s50, s50, s51\ns_lshl_b32 s51, {sQT}, 17\ns_or_b32 s50, s50, s51\ns_or_b32 s50, s50, {sG}')
    e(f'v_mov_b32 v1, {BCAST}\nv_mov_b32 v2, s50\nds_write_b32 v1, v2\ns_waitcnt lgkmcnt(0)')

def bcast_issue(v): return [f'v_mov_b32 v{v}, {BCAST}', f'ds_read_b32 v{v}, v{v}']
def bcast_take(v):
    return [f'v_readfirstlane_b32 s50, v{v}', 's_nop 0', f's_and_b32 {sG}, s50, 7', f's_bfe_u32 {sR}, s50, 0x50008', f's_bfe_u32 {sMODE}, s50, 0x10010', f's_bfe_u32 {sQT}, s50, 0x10011']

def store_act(lines, flag=sMODE):
    A = g.lab('STS'); B = g.lab('STD')
    for l in lines:
        if l.startswith('buffer'): g.wait_for(*[t.strip() for t in l.split(None, 1)[1].split(',')[:2]])
    e(f's_cmp_lg_u32 {flag}, 0\ns_cbranch_scc1 {A}')
    save = list(g.vm)
    for l in lines: e(l)
    e(f's_branch {B}')
    e(f'{A}:')
    g.vm = save
    for l in lines: e(l + (' sc1' if l.startswith('buffer') else ''))
    e(f'{B}:')

def dma_loop(n, first, stride, body, cnt='s52'):
    L = g.lab('DL'); X = g.lab('DX')
    e(f's_mov_b32 {cnt}, {first}')
    e(f's_cmp_ge_u32 {cnt}, {n}\ns_cbranch_scc1 {X}')
    e(f'{L}:')
    body()
    e(f's_add_u32 {cnt}, {cnt}, {stride}\ns_cmp_lt_u32 {cnt}, {n}\ns_cbranch_scc1 {L}')
    e(f'{X}:')

def s_qkv_cols(r):
    e(f's_and_b32 s50, {r}, 15\ns_lshr_b32 s51, s50, 1\ns_and_b32 s50, s50, 1')
    e('s_lshl_b32 s53, s50, 10\ns_lshl_b32 s54, s51, 7\ns_add_u32 s53, s53, s54')
    e('s_lshl_b32 s55, s50, 6\ns_add_u32 s54, s54, s55\ns_add_u32 s54, s54, 2048')

def addr_qkvB(r):
    lane(9)
    s_qkv_cols(r)
    e('s_sub_u32 s54, s54, 128')
    for i in range(3):
        e(f'v_add_u32 v13, {64 * i}, v9\nv_mul_u32_u24 v14, 171, v13\nv_lshrrev_b32 v14, 11, v14')
        e('v_mul_u32_u24 v15, 12, v14\nv_sub_u32 v15, v13, v15')
        e('v_mov_b32 v16, s53\nv_mov_b32 v17, s54\nv_cmp_gt_u32 vcc, 8, v15\ns_nop 1\nv_cndmask_b32 v16, v17, v16, vcc')
        e(f'v_lshl_add_u32 v16, v15, 4, v16\nv_mul_u32_u24 v14, 3072, v14\nv_add_u32 v{10 + i}, v14, v16')
def qkvB_block(ks):
    e(f's_mul_i32 s53, {ks}, 3072\ns_mul_i32 s54, {ks}, 49152')
    for i in range(3):
        e(f's_add_u32 m0, s53, {1024 * i}\ns_nop 0')
        e(f'buffer_load_dwordx4 v{10 + i}, {SWQ}, s54 offen lds')
def dma_qkvB(lo, hi):
    e(f's_add_u32 s56, {sW}, {lo - 5}')
    dma_loop(hi, 's56', 3, lambda: qkvB_block('s52'))

def addr_128(v, stride):
    lane(v)
    e(f'v_lshrrev_b32 v13, 3, v{v}\nv_and_b32 v14, 7, v{v}\nv_lshlrev_b32 v15, 1, v13\nv_and_b32 v15, 4, v15\nv_xor_b32 v14, v14, v15')
    e(f'v_mul_u32_u24 v13, {stride}, v13\nv_lshl_add_u32 v{v}, v14, 4, v13')

def s_fb(dst):
    e(f's_and_b32 {dst}, {sR}, 15\ns_min_u32 {dst}, {dst}, 13\ns_lshl_b32 {dst}, {dst}, 8')

def w1_instr(n, v, sfb):
    e(f's_lshl_b32 s53, {n}, 10\ns_add_u32 m0, s53, {W1R}\ns_and_b32 s53, {n}, 63\ns_mul_i32 s53, s53, 28672\ns_add_u32 s53, s53, {sfb}')
    e(f's_cmp_lt_u32 {n}, 64\ns_cselect_b32 s51, 128, 0\ns_add_u32 s53, s53, s51')
    e(f'buffer_load_dwordx4 v{v}, {SW1}, s53 offen lds')
def dma_w1(lo, hi):
    addr_128(9, 3584); s_fb('s55')
    e(f's_add_u32 s56, {sW}, {lo - 5}')
    dma_loop(hi, 's56', 3, lambda: w1_instr('s52', 9, 's55'))

def dma_w2(region):
    addr_128(9, 1024)
    e(f's_and_b32 s55, {sR}, 7\ns_lshl_b32 s55, s55, 7\ns_sub_u32 s56, {sW}, 5')
    def bx():
        e(f's_lshl_b32 m0, s52, 10\ns_lshl_b32 s54, s52, 13\ns_add_u32 s54, s54, s55\ns_cmp_ge_u32 s52, 14\ns_cselect_b32 s51, {(896 - 112) * 1024}, 0\ns_add_u32 s54, s54, s51')
        e(f'buffer_load_dwordx4 v9, {SW2}, s54 offen lds')
    def by():
        e(f's_lshl_b32 s53, s52, 10\ns_add_u32 m0, s53, {W2Y}\ns_lshl_b32 s54, s52, 13\ns_add_u32 s54, s54, s55\ns_cmp_ge_u32 s52, 32\ns_cselect_b32 s51, {(896 - 256) * 1024}, 0\ns_add_u32 s54, s54, s51\ns_add_u32 s54, s54, {112 * 1024}')
        e(f'buffer_load_dwordx4 v9, {SW2}, s54 offen lds')
    if region == 'X': dma_loop(28, 's56', 3, bx)
    else: dma_loop(64, 's56', 3, by)

def w2_regs_load():
    addr_128(9, 1024)
    e(f's_and_b32 s50, {sW}, 1\ns_mul_i32 s50, s50, 896\ns_bfe_u32 s51, {sW}, 0x10001\ns_lshl_b32 s51, s51, 3\ns_add_u32 s50, s50, s51\ns_add_u32 s50, s50, 368\ns_lshl_b32 s50, s50, 10')
    e(f's_and_b32 s51, {sR}, 7\ns_lshl_b32 s51, s51, 7\ns_add_u32 s50, s50, s51')
    for m in range(33):
        e(f'buffer_load_dwordx4 {vr(WR + 4 * m)}, v9, {SW2}, s50 offen\ns_add_u32 s50, s50, 16384')
def w2_regs_put(part):
    lane(9)
    e(f's_and_b32 s50, {sW}, 1\ns_bfe_u32 s51, {sW}, 0x10001\ns_lshl_b32 s51, s51, 10\nv_lshl_add_u32 v9, v9, 4, s51')
    if part == 'Z':
        e(f's_lshl_b32 s50, s50, 15\ns_add_u32 s50, s50, {W2Z}\nv_add_u32 v10, s50, v9')
        for m in range(16): e(f'ds_write_b128 v10, {vr(WR + 4 * m)} offset:{2048 * m}')
    else:
        e(f's_mul_i32 s51, s50, 14336\nv_add_u32 v10, s51, v9\ns_lshl_b32 s50, s50, 15\ns_add_u32 s50, s50, {W2Y}\nv_add_u32 v11, s50, v9')
        for m in range(17):
            e(f'ds_write_b128 v{10 if m < 7 else 11}, {vr(WR + 64 + 4 * m)} offset:{2048 * (m if m < 7 else m - 7)}\ns_waitcnt lgkmcnt(0)')
    e('s_waitcnt lgkmcnt(0)')

def tr_lane_parts(vl, t0):
    e(f'v_bfe_u32 v{t0}, v{vl}, 2, 2\nv_bfe_u32 v{t0+1}, v{vl}, 4, 1\nv_lshlrev_b32 v{t0+1}, 5, v{t0+1}\nv_and_b32 v{t0+2}, 3, v{vl}')
    e(f'v_lshl_add_u32 v{t0+1}, v{t0+2}, 3, v{t0+1}\nv_lshrrev_b32 v{t0+2}, 5, v{vl}')
def tr128(dst, t0, ft):
    e(f'v_lshl_add_u32 v{dst}, v{t0+2}, 2, v{t0}\nv_lshlrev_b32 v{dst}, 7, v{dst}\nv_add_u32 v{dst}, v{dst}, v{t0+1}')
    e(f'v_lshrrev_b32 v{dst+1}, 1, v{t0}\nv_xor_b32 v{dst+1}, {ft}, v{dst+1}\nv_lshl_add_u32 v{dst}, v{dst+1}, 6, v{dst}\nv_xor_b32 v{dst+1}, 64, v{dst}')
def trrd(b, a, o, second): return f'ds_read_b64_tr_b16 v[{b}:{b+1}], v{a} offset:{o}\nds_read_b64_tr_b16 v[{b+2}:{b+3}], v{a} offset:{o + second}'

def qkv0_loader():
    SK = g.lab('QSK'); SK2 = g.lab('QSK')
    e('s_setprio 3')
    addr_qkvB(sR)
    e(f's_sub_u32 s52, {sW}, 6\ns_cmp_eq_u32 {sW}, 5\ns_cbranch_scc1 {SK}')
    qkvB_block('s52')
    e(f'{SK}:')
    LA = int(OPT.get('la', 8))
    for i in range(1, LA): e('s_add_u32 s52, s52, 3'); qkvB_block('s52')
    tr_lane_parts(9, 13)
    e(f'v_lshl_add_u32 v16, v15, 2, v13\nv_mul_u32_u24 v16, 192, v16\nv_add_u32 v16, v16, v14\ns_sub_u32 s50, {sW}, 3\ns_mul_i32 s50, s50, 3072')
    e(f's_max_u32 s51, {sW}, 6\ns_sub_u32 s51, s51, 6\ns_mul_i32 s51, s51, 3072\nv_add_u32 v36, s51, v16\nv_add_u32 v37, s50, v16\nv_add_u32 v38, {5 * 9216}, v37')
    for k in range(12): e(f'v_mov_b32 v{40 + k}, 0')
    for i in range(11):
        if i + LA < 11: e('s_add_u32 s52, s52, 3'); qkvB_block('s52')
        g.raw(f's_waitcnt vmcnt({3 * min(LA, 10 - i)})')
        if i == 1: lstamp(0)
        if i == 10: lstamp(1)
        if i == 0: e(f's_cmp_eq_u32 {sW}, 5\ns_cbranch_scc1 {SK2}')
        for j in range(3): e(trrd(24 + 4 * j, 36 + (i + 4) // 5, ((i - 1) % 5 if i else 0) * 9216 + 64 * j, 1536))
        for j in range(3):
            for k in range(4): e(f'v_dot2c_f32_bf16 v{40 + 4*j + k}, {ONES}, v{24 + 4*j + k}')
        if i == 0: e(f'{SK2}:')
    e('s_setprio 0')
    e(f's_mul_i32 s52, {sW}, 384\ns_add_u32 s52, s52, {CSQ3 - 5 * 384}\nv_and_b32 v9, 31, v9\nv_lshl_add_u32 v9, v9, 2, s52')
    for j in range(3): e(f'v_add_f32 v{40 + 4*j}, v{40 + 4*j}, v{41 + 4*j}\nv_add_f32 v{42 + 4*j}, v{42 + 4*j}, v{43 + 4*j}\nv_add_f32 v{40 + 4*j}, v{40 + 4*j}, v{42 + 4*j}')
    for j in range(3): e(f'v_mov_b32 v{41 + 4*j}, v{40 + 4*j}')
    e('s_nop 0')
    for j in range(3): e(f'v_permlane32_swap_b32 v{40 + 4*j}, v{41 + 4*j}\nv_add_f32 v{40 + 4*j}, v{40 + 4*j}, v{41 + 4*j}\nds_write_b32 v9, v{40 + 4*j} offset:{128 * j}')
    e('s_waitcnt lgkmcnt(0)')
    stamp('q0_ddone', 1)

def colsum(kind):
    lane(9); tr_lane_parts(9, 13)
    nks = 32
    if kind == 'qkv':
        e(f's_sub_u32 s50, {sW}, 5\ns_lshl_b32 s51, s50, 6')
        e('v_lshl_add_u32 v16, v15, 2, v13\nv_mul_u32_u24 v16, 192, v16\nv_add3_u32 v16, v16, v14, s51\nv_add_u32 v17, 49152, v16')
        step, second, tab = 3072, 8 * 192, CSQ
    elif kind == 'w1p':
        e(f's_sub_u32 s50, {sW}, 5')
        tr128(16, 13, 's50')
        e(f'v_add_u32 v16, {W1P}, v16\nv_add_u32 v17, 32768, v16')
        step, second, tab = 2048, 1024, CS1
    else:
        e(f's_and_b32 s51, {sW}, 1')
        tr128(16, 13, 's51')
        e(f's_bfe_u32 s50, {sW}, 0x10001\ns_lshl_b32 s51, s50, 15\ns_add_u32 s51, s51, {W1R}\nv_add_u32 v16, s51, v16\ns_sub_u32 s50, {sW}, 2')
        step, second, tab, nks = 2048, 1024, CS1, 16
    for k in range(8): e(f'v_mov_b32 v{44 + k}, 0')
    def rd(ks): e(trrd(20 + 4 * (ks % 4), 16 + ks // 16, (ks % 16) * step, second))
    for ks in range(3): rd(ks)
    for ks in range(nks):
        if ks + 3 < nks: rd(ks + 3)
        b = 20 + 4 * (ks % 4)
        if kind == 'w1r':
            for j in range(4): e(f'v_lshlrev_b32 v{36 + j}, 16, v{b + j}\nv_and_b32 v{40 + j}, 0xffff0000, v{b + j}')
            for j in range(0, 8, 2): e(f'v_pk_add_f32 v[{44 + j}:{45 + j}], v[{44 + j}:{45 + j}], v[{36 + j}:{37 + j}]')
        else:
            for j in range(4): e(f'v_dot2c_f32_bf16 v{44 + 4 * (ks & 1) + j}, {ONES}, v{b + j}')
    e('s_nop 2')
    for st in (4, 2, 1):
        for j in range(st): e(f'v_add_f32 v{44 + j}, v{44 + j}, v{44 + j + st}')
    e('v_mov_b32 v45, v44\ns_nop 1\nv_permlane32_swap_b32 v44, v45\nv_add_f32 v44, v44, v45')
    e(f'v_and_b32 v9, 31, v9\ns_lshl_b32 s50, s50, 7\ns_add_u32 s50, s50, {tab}\nv_lshl_add_u32 v9, v9, 2, s50\nds_write_b32 v9, v44\ns_waitcnt lgkmcnt(0)')

def stats_finish(vS, vQ, vA, ext, vL):
    return [f'v_mul_f32 v{vS}, {fl(-1/512)}, v{vS}', f'v_mul_f32 v{vQ}, {fl(1/512)}, v{vQ}',
            f'v_fma_f32 v{vQ}, -v{vS}, v{vS}, v{vQ}', f'v_max_f32 v{vQ}, 0, v{vQ}', f'v_add_f32 v{vQ}, {fl(1e-5)}, v{vQ}',
            f'v_rsq_f32 v{vA}, v{vQ}', f'v_cmp_gt_u32 vcc, 32, v{vL}',
            f'v_cvt_pk_bf16_f32 v{ext}, v{vS}, v{vS}', f'v_lshlrev_b32 v{vQ}, 16, v{ext}', f'v_sub_f32 v{vS}, v{vS}, v{vQ}',
            f'v_cvt_pk_bf16_f32 v{ext+1}, v{vS}, 0', f'v_cndmask_b32 v{ext}, 0, v{ext}, vcc', f'v_cndmask_b32 v{ext+1}, 0, v{ext+1}, vcc',
            f'v_mov_b32 v{ext+2}, 0', f'v_mov_b32 v{ext+3}, 0']
def ext_w(ext, vaddr, off, three=False):
    o = [f'ds_read_b32 v{ext+2}, v{vaddr} offset:{off}']
    if three == 2: o += [f'ds_read_b32 v{ext}, v{vaddr} offset:{off + 256}', f'v_add_f32 v{ext+2}, v{ext+2}, v{ext}']
    elif three: o += [f'ds_read_b32 v{ext}, v{vaddr} offset:{off + 384}', f'ds_read_b32 v{ext+1}, v{vaddr} offset:{off + 768}', f'v_add_f32 v{ext+2}, v{ext+2}, v{ext}', f'v_add_f32 v{ext+2}, v{ext+2}, v{ext+1}']
    return o + [f'v_cvt_pk_bf16_f32 v{ext+1}, v{ext+2}, 0', f'v_lshlrev_b32 v{ext+3}, 16, v{ext+1}',
            f'v_sub_f32 v{ext+3}, v{ext+2}, v{ext+3}', f'v_cvt_pk_bf16_f32 v{ext}, v{ext+2}, v{ext+3}', f'v_mov_b32 v{ext+2}, 0', f'v_mov_b32 v{ext+3}, 0']
def stats_load(sbase, t0, vOff4):
    for ft in range(16): e(f'buffer_load_dword v{t0 + ft}, v{vOff4}, {SWS}, {sbase} offen offset:{ft * 256} sc1')
def stats_reduce(t0, vS, vQ):
    o = []
    for s in (8, 4, 2, 1):
        for k in range(s): o.append(f'v_add_f32 v{t0 + k}, v{t0 + k}, v{t0 + k + s}')
    o += [f'v_mov_b32 v{vS}, v{t0}', f'v_mov_b32 v{vQ}, v{t0}', 's_nop 1', f'v_permlane32_swap_b32 v{vS}, v{vQ}']
    return o
def cvt_half(acc):
    return [f'v_cvt_pk_bf16_f32 v{acc + k}, v{acc + 2 * k}, v{acc + 2 * k + 1}' for k in range(4)]

AINIT = int(OPT.get('ainit', 10))
class ALoader:
    def __init__(self, A, _, sreg, n, vaddr): self.A, self.s, self.n, self.v, self.k = A, sreg, n, vaddr, 0
    def issue(self, cnt, limit=None):
        for _ in range(cnt):
            ks = self.k
            if ks >= self.n or (limit is not None and ks >= limit): return
            self.k += 1
            e(f'buffer_load_dwordx4 {vr(self.A + 4 * (ks % 32))}, v{self.v}, {SWS}, {self.s} offen offset:{1024 * (ks & 3)} sc1')
            if (ks & 3) == 3: e(f's_add_u32 {self.s}, {self.s}, 4096')

def qkv_compute(first):
    A = 0; ACC = 128; BR = 176; vB = 208; vL = 212; vA_ = 213; vo = 214; vo2 = 215; T = 216; vAo = 159
    EX = 232; EW = [236, 240, 244]
    e('s_setprio 1')
    lane(vL)
    e(f's_lshr_b32 s44, {sR}, 4\ns_lshl_b32 s45, {sG}, 1\ns_add_u32 s44, s44, s45\ns_mul_i32 s71, s44, {ARENA}\ns_lshl_b32 s44, s44, 2\ns_add_u32 s44, s44, {sW}')
    if first:
        e(f'v_lshrrev_b32 v{T}, 3, v{vL}\nv_and_b32 v{T+1}, 7, v{vL}\nv_lshlrev_b32 v{T+2}, 10, v{T}\nv_lshl_add_u32 v{T+2}, v{T+1}, 4, v{T+2}')
        e('s_lshl_b32 s45, s44, 15\ns_add_u32 s46, s45, 8192\ns_add_u32 s47, s45, 16384\ns_add_u32 s48, s45, 24576')
        for q in range(8):
            for i in range(4): e(f'buffer_load_dwordx4 {vr(A + 16 * q + 4 * i)}, v{T+2}, {SX}, s{45 + i} offen offset:{128 * q}')
        lstamp(3)
        lstamp(4)
        e(f's_lshl_b32 s49, {sW}, 13\ns_add_u32 s49, s49, {XST}')
        e(f'v_lshrrev_b32 v{T+3}, 4, v{vL}\nv_xor_b32 v{T+3}, v{T+3}, v{T+1}\nv_lshlrev_b32 v{T+4}, 7, v{T}\nv_add_u32 v{T+4}, s49, v{T+4}')
        e(f'v_lshl_add_u32 v{T+5}, v{T+3}, 4, v{T+4}\nv_xor_b32 v{T+3}, 4, v{T+3}\nv_lshl_add_u32 v{T+6}, v{T+3}, 4, v{T+4}')
        e(f'v_and_b32 v{T}, 31, v{vL}\nv_lshrrev_b32 v{T+1}, 5, v{vL}\nv_bfe_u32 v{T+3}, v{vL}, 1, 3\nv_xor_b32 v{T+1}, v{T+1}, v{T+3}')
        e(f'v_lshlrev_b32 v{T}, 7, v{T}\nv_add_u32 v{T}, s49, v{T}')
        for s in range(4): e(f'v_xor_b32 v{T+3}, {2 * s}, v{T+1}\nv_lshl_add_u32 v{T+7+s}, v{T+3}, 4, v{T}')
        for k in range(4): e(f'v_mov_b32 v{T+12+k}, 0')
        def dots(q):
            for r in range(16):
                e(f'v_dot2c_f32_bf16 v{T+12+(r&1)}, {ONES}, v{A + 16*q + r}\nv_dot2c_f32_bf16 v{T+14+(r&1)}, v{A + 16*q + r}, v{A + 16*q + r}')
        for q in range(8):
            for i in range(4): e(f'ds_write_b128 v{T+5+(i&1)}, {vr(A + 16*q + 4*i)} offset:{1024*i + 4096*(q&1)}')
            for s in range(4): e(f'ds_read_b128 {vr(A + 16*q + 4*s)}, v{T+7+s} offset:{4096*(q&1)}')
            if q == 0: lstamp(5)
            if q == 7: lstamp(6)
            if q: dots(q - 1)
        dots(7)
        e(f's_nop 2\nv_add_f32 v{T+12}, v{T+12}, v{T+13}\nv_add_f32 v{T+14}, v{T+14}, v{T+15}\ns_nop 1\nv_permlane32_swap_b32 v{T+12}, v{T+14}')
        e(f'v_add_f32 v{T+12}, v{T+12}, v{T+14}\nv_mov_b32 v{T+14}, v{T+12}\ns_nop 1\nv_permlane32_swap_b32 v{T+12}, v{T+14}')
        run(stats_finish(T + 12, T + 14, vA_, EX, vL))
        lstamp(7)
        pre = []
    else:
        e(f'v_lshlrev_b32 v{vo2}, 2, v{vL}\nv_lshlrev_b32 v{vAo}, 4, v{vL}')
        e(f's_add_u32 s55, s71, {sAX2}\ns_lshl_b32 s45, {sW}, 12\ns_add_u32 s45, s45, s55\ns_add_u32 s45, s45, {A_ST}\ns_lshl_b32 s47, {sW}, 15\ns_add_u32 s55, s55, s47\ns_add_u32 s55, s55, {A_X}')
    tr_lane_parts(vL, BR)
    r_, c_, h_ = BR, BR + 1, BR + 2
    if first: e(f'v_lshl_add_u32 v{vB}, v{h_}, 3, v{r_}\nv_add_u32 v{vB+1}, 4, v{vB}')
    else: e(f'v_lshl_add_u32 v{vB}, v{h_}, 2, v{r_}\nv_add_u32 v{vB+1}, 8, v{vB}')
    for k in range(2): e(f'v_mul_u32_u24 v{vB+k}, 192, v{vB+k}\nv_add_u32 v{vB+k}, v{vB+k}, v{c_}\nv_add_u32 v{vB+2+k}, 49152, v{vB+k}')
    if not first:
        barrier()
        stamp('qkv_start', 0)
        stats_load('s45', T, vo2)
        al = ALoader(A, vo2 + 0, 's55', 32, vaddr=vAo)
        al.issue(AINIT)
        pre = stats_reduce(T, EW[0], EW[0] + 1) + stats_finish(EW[0], EW[0] + 1, vA_, EX, vL)
    barrier()
    if not first: dyn_barrier()
    stamp('qkv_bl', 0)
    nfr = [0]
    seq = [(ks, j) for ks in range(32) for j in (2, 0)] + [(ks, 1) for ks in range(32)]
    regs = {}; AH = 6
    def issue(n):
        if n >= len(seq): return
        ks, j = seq[n]
        b = BR + 4 * (nfr[0] % 8); nfr[0] += 1; regs[n] = b
        a = vB + 2 * (ks // 16); o = (ks % 16) * 3072 + 64 * j
        e(f'ds_read_b64_tr_b16 v[{b}:{b+1}], v{a} offset:{o}\nds_read_b64_tr_b16 v[{b+2}:{b+3}], v{a+1} offset:{o}')
    for n in range(AH): issue(n)
    def mm(j, w, x, c):
        acc = ACC + 16 * j
        return f'v_mfma_f32_32x32x16_bf16 {vr(acc,16)}, {vr(w if j < 2 else x)}, {vr(x if j < 2 else w)}, {vr(acc,16) if c else 0}'
    slots = []
    for n, (ks, j) in enumerate(seq):
        def mf(n=n, ks=ks, j=j):
            e(mm(j, regs[n], A + 4 * ks, ks)); issue(n + AH)
            if not first and n & 1: al.issue(1)
        slots.append([mf])
    pre += [f'v_and_b32 v{T+15}, 31, v{vL}', f'v_lshlrev_b32 v{T+15}, 2, v{T+15}', f's_lshl_b32 s52, {sW}, 8', f's_add_u32 s52, s52, {VST}',
            f'v_add_u32 v{vo}, s52, v{T+15}', f'ds_write_b32 v{vo}, v{vA_}', f'v_add_u32 v{T+15}, {CSQ3 if first else CSQ}, v{T+15}']
    for j in range(3): pre += ext_w(EW[j], T + 15, 128 * j, first)
    pre += [f'v_lshrrev_b32 v{vo}, 5, v{vL}', f'v_lshl_add_u32 v{vo}, v{vo}, 4, s52']
    for q in range(4): pre.append(f'ds_read_b128 {vr(T + 4*q)}, v{vo} offset:{32*q}')
    pre += [f's_and_b32 s49, {sR0}, 15', 's_lshr_b32 s51, s49, 1', 's_and_b32 s49, s49, 1',
            f's_lshl_b32 s45, {sW}, 10', f's_add_u32 s45, s45, {sAQ}', 's_add_u32 s45, s45, s71', 's_lshl_b32 s52, s51, 14', 's_add_u32 s45, s45, s52',
            f's_add_u32 s46, s45, {A_V}', 's_lshl_b32 s52, s49, 13', 's_add_u32 s46, s46, s52',
            's_lshl_b32 s52, s49, 17', 's_add_u32 s45, s45, s52',
            's_lshl_b32 s53, s44, 10', f's_add_u32 s53, s53, {sK}', 's_lshl_b32 s54, s51, 18', 's_add_u32 s53, s53, s54',
            f's_add_u32 s54, s53, {2 * MB}', 's_add_u32 s54, s54, s52',
            f's_cmp_eq_u32 s49, 0\ns_cselect_b32 s47, {fl(0.25 * LOG2E)}, 1.0\ns_cselect_b32 s48, 0, 12',
            f'v_mul_f32 v{vA_}, s47, v{vA_}',
            f'v_lshrrev_b32 v{vo}, 1, v{vL}', f'v_xor_b32 v{vo}, v{vo}, v{vL}', f'v_bfe_i32 v{vo}, v{vo}, 2, 1', f'v_and_b32 v{vo}, s48, v{vo}',
            f'v_xor_b32 v{vo}, v{vo}, v{vL}', f'v_lshlrev_b32 v{vo}, 4, v{vo}']
    merge(slots[:64], pre, start=4 if first else 8, per=2)
    e(mm(2, EW[2], EX, 1)); e(mm(0, EW[0], EX, 1))
    fill = []
    if first:
        barrier()
        fill += bcast_issue(EW[0])
    lstamp(0)
    vg, vl = EW[2], EW[2] + 1
    fill += [f'v_and_b32 v{vg}, 15, v{vL}', f'v_lshlrev_b32 v{vg}, 4, v{vg}', f'v_lshrrev_b32 v{vl}, 5, v{vL}', f'v_lshl_add_u32 v{vg}, v{vl}, 8, v{vg}',
             f'v_bfe_u32 v{vL}, v{vL}, 4, 1', f'v_lshl_add_u32 v{vl}, v{vL}, 12, v{vg}', f'v_lshl_add_u32 v{vg}, v{vL}, 16, v{vg}']
    if first: fill += bcast_take(EW[0])
    acc = ACC + 32
    for half in (0, 8):
        fill += [f'v_mul_f32 v{acc + half + r}, v{T + half + r}, v{acc + half + r}' for r in range(8)] + cvt_half(acc + half)
    fill += [f'buffer_store_dwordx4 {vr(acc + half)}, v{vg}, {SWS}, s54 offen offset:{64 * half} sc1' for half in (0, 8)]
    fill.append(lambda acc=acc: store_act([f'buffer_store_dwordx4 {vr(acc + half)}, v{vl}, {SWS}, s46 offen offset:{64 * half}' for half in (0, 8)], sQS))
    def qk_epi(j):
        acc = ACC + 16 * j; o = []
        for half in (0, 8):
            o += [f'v_mul_f32 v{acc + half + r}, v{vA_}, v{acc + half + r}' for r in range(8)] + cvt_half(acc + half)
        o.append(lambda: store_act([f'buffer_store_dwordx4 {vr(acc)}, v{vo}, {SWS}, s45 offen', 's_add_u32 s45, s45, 4096',
                                    f'buffer_store_dwordx4 {vr(acc + 8)}, v{vo}, {SWS}, s45 offen', 's_add_u32 s45, s45, 4096'], sQS))
        return o
    def k_glob(j):
        for n in range(2): g.raw(f'buffer_store_dwordx4 {vr(ACC + 16 * j + 8 * n)}, v{vo}, {SWS}, s53 offen sc1'); e('s_add_u32 s53, s53, 65536')
    def k_glob0():
        X = g.lab('QK0')
        e(f's_cmp_eq_u32 s49, 0\ns_cbranch_scc1 {X}'); k_glob(0); e(f'{X}:')
    fill += qk_epi(0) + [k_glob0]
    merge(slots[64:], fill, start=0, per=3)
    e(mm(1, EW[1], EX, 1))
    lstamp(1)
    e('s_nop 11')
    run(qk_epi(1))
    WA = g.lab('QWA'); WD = g.lab('QWD')
    e(f's_cmp_eq_u32 s49, 0\ns_cbranch_scc1 {WA}')
    k_glob(1)
    e(f's_cmp_lg_u32 {sQS}, 0\ns_cbranch_scc1 {WA}')
    g.raw('s_waitcnt vmcnt(2)')
    e(f's_branch {WD}')
    e(f'{WA}:')
    g.raw('s_waitcnt vmcnt(0)')
    e(f'{WD}:')
    e('s_setprio 0')
    lstamp(2)
    barrier()
    lstamp_flush(['qkv_k', 'qkv_t2', 'qkv_loc'] + (['q0_iss', 'q0_b0', 'q0_x0', 'q0_x7', 'q0_cdone'] if first else []))

def dyn_barrier(work=None):
    X = g.lab('DYN')
    e(f's_cmp_eq_u32 {sDY}, 0\ns_cbranch_scc1 {X}')
    save = (list(g.vm), list(g.lg))
    if work: work()
    barrier()
    g.vm, g.lg = save
    e(f'{X}:')

def qkv_phase(first):
    LH = g.lab('QH'); LD = g.lab('QD'); LE = g.lab('QE')
    g.reset_track()
    e(f's_mov_b32 {sR0}, {sR}\ns_mov_b32 {sGQ}, {sG}\ns_add_u32 {sGEP}, {sLAY}, 1')
    e(f's_cmp_ge_u32 {sW}, 4\ns_cbranch_scc1 {LH}')
    qkv_compute(first)
    e(f's_branch {LE}')
    e(f'{LH}:'); g.reset_track()
    e(f's_cmp_ge_u32 {sW}, 5\ns_cbranch_scc1 {LD}')
    if first:
        register_start()
        if 'nocodepf' not in OPT:
            lane(9)
            e(f's_getpc_b64 s[54:55]\nCODEPF:\ns_and_b32 s54, s54, 0xffffff80\ns_lshr_b32 s50, s2, 3\ns_lshl_b32 s50, s50, 11\nv_lshl_add_u32 v9, v9, 7, s50\nv_min_u32 v9, L_END-CODEPF-128, v9')
            e('s_mov_b64 exec, 0xffff')
            g.raw('global_load_dword v60, v9, s[54:55]')
            e('s_mov_b64 exec, -1')
        stamp('q0_sdone', 1)
        barrier()
        register_resolve()
        barrier()
    else:
        arrive_local(); poll_local('half')
        barrier(); barrier()
        dyn_barrier()
    barrier()
    arrive_local()
    e(f's_branch {LE}')
    e(f'{LD}:'); g.reset_track()
    if first:
        qkv0_loader()
        if PROF:
            _sstore(_sidx('q0_d1', 1), 1, 's72'); _sstore(_sidx('q0_d10', 1), 1, 's74')
        barrier()
        e(f's_sub_u32 s50, {sW}, 5\ns_lshl_b32 s50, s50, 7')
        lane(9)
        e(f'v_and_b32 v9, 31, v9\nv_lshl_add_u32 v9, v9, 2, s50\nv_add_u32 v10, {CSQ3}, v9\nv_add_u32 v9, {CSQ}, v9')
        e('ds_read_b32 v11, v10\nds_read_b32 v12, v10 offset:384\nds_read_b32 v13, v10 offset:768\nv_add_f32 v11, v11, v12\nv_add_f32 v11, v11, v13\nds_write_b32 v9, v11')
        barrier()
        run(bcast_issue(2) + bcast_take(2))
    else:
        dma_qkvB(0, 10); dma_qkvB(21, 27); dma_qkvB(31, 32)
        barrier()
        e('s_waitcnt vmcnt(0)')
        barrier()
        dyn_barrier(lambda: colsum('qkv'))
    barrier()
    e(f'{LE}:'); g.reset_track()

def attention():
    S = [0, 16]; O = 32; NM = 48; Q = 64; KF = [68, 72]; V0 = [76, 80]; V1 = [84, 88]
    vK, vV, vI, vD, vL, vW1, vWO, vP, vPA, vPD, DUM = 92, 93, 94, 95, 96, 97, 98, 48, 99, 102, 100
    DONE = g.lab('ADONE')
    e(f's_mov_b32 {sRETRY}, 0')
    e(f's_mul_i32 s50, {sLAY}, 5\ns_mul_i32 s51, {sMODE}, {ASET}\ns_mul_i32 s50, s50, s51\ns_add_u32 s50, s50, {AB}')
    for r_ in (sAO, sAX1, sAH, sAX2): e(f's_add_u32 s50, s50, s51\ns_mov_b32 {r_}, s50')
    lane(vL)
    def chunks():
        X = g.lab('ACH')
        e(f's_cmp_lt_u32 {sW}, 4\ns_cbranch_scc1 {X}')
        e(f's_cmp_lt_u32 {sW}, 6\ns_cselect_b32 s44, {ONES}, 0\ns_cselect_b32 s50, 0, 16')
        e('v_mov_b32 v0, s44\nv_mov_b32 v1, s44\nv_mov_b32 v2, s44\nv_mov_b32 v3, s44')
        e(f'v_lshrrev_b32 v4, 4, v{vL}\ns_and_b32 s44, {sW}, 1\ns_lshl_b32 s44, s44, 2\nv_add_u32 v4, s44, v4\nv_mul_u32_u24 v4, {STG}, v4')
        e(f'v_and_b32 v5, 15, v{vL}\nv_mul_u32_u24 v5, {VP}, v5\nv_add3_u32 v4, v4, v5, s50\nds_write_b128 v4, v[0:3] offset:{KV0 + 8192 + 512}')
        e(f'{X}:')
    def consts():
        e(f'v_add_u32 v{vK}, {KV0}, v{vD}')
        e(f'v_and_b32 v4, 31, v{vL}\nv_lshrrev_b32 v5, 5, v{vL}\nv_lshlrev_b32 v5, 8, v5\nv_lshl_add_u32 v5, v4, 4, v5\nv_cmp_gt_u32 vcc, 16, v4')
        e(f'v_min_u32 v6, 17, v4\nv_lshl_add_u32 v6, v6, 4, 64\nv_add_u32 v6, 192, v6\nv_cndmask_b32 v{vV}, v6, v5, vcc\nv_add_u32 v{vV}, {KV0 + 8192}, v{vV}')
        for r in range(16): e(f'v_mov_b32 v{O + r}, 0')
    e(f'v_lshlrev_b32 v{vD}, 4, v{vL}')
    e(f's_lshr_b32 s45, {sW}, 2\ns_lshl_b32 s46, {sG}, 1\ns_add_u32 s45, s45, s46\ns_mul_i32 s45, s45, {ARENA}')
    e(f's_and_b32 s46, {sW}, 3\ns_lshl_b32 s46, s46, 10\ns_lshl_b32 s47, {sR}, 12\ns_add_u32 s46, s46, s47\ns_add_u32 s46, s46, s45\ns_add_u32 s46, s46, {sAQ}')
    e(f's_add_u32 s48, s46, {A_K}\ns_add_u32 s49, s46, {A_V}\ns_lshl_b32 s47, {sW}, 10')
    e(f's_add_u32 s67, s47, {KV0}\ns_mul_i32 s68, {sW}, {2 * VP}\ns_add_u32 s68, s68, {KV0 + 8192}')
    e(f's_lshl_b32 s50, {sG}, 3\ns_lshr_b32 s51, {sR}, 2\ns_add_u32 s50, s50, s51\ns_lshl_b32 s50, s50, 9\ns_add_u32 s50, s50, {FL_GLB}\nv_lshl_add_u32 v{vPA}, v{vL}, 3, s50')
    vT, vA1, vA2, vRS, vA3 = 50, 51, 52, 53, 56
    sKC, sWOd, sWOs, sW1d, sW1s, sPK = 's92', 's93', 's94', 's95', 's96', 's97'
    def setup2():
        chunks(); consts()
        e(f'v_mov_b32 v4, {BCAST + 4}\nv_mov_b32 v5, 0\nds_write_b32 v4, v5\nv_mov_b32 v{vI}, 0xdddddddd')
        addr_128(vW1, 3584); addr_128(vWO, 1024)
        e(f's_lshl_b32 s44, {sR}, 16\ns_add_u32 s44, s44, {sK}\ns_add_u32 s44, s44, s47')
        s_fb('s54'); e(f's_and_b32 s55, {sR}, 7\ns_lshl_b32 s55, s55, 7\ns_mov_b32 s71, 0')
        e(f's_lshr_b32 s47, {sW}, 2\ns_andn2_b32 s47, s47, {sLAY}')
        e(f's_lshl_b32 {sKC}, {sG}, 13')
        e(f's_lshl_b32 {sWOd}, {sW}, 10\ns_lshl_b32 {sWOs}, {sW}, 13\ns_add_u32 {sWOs}, {sWOs}, s55')
        e(f's_add_u32 {sW1d}, {sWOd}, {W1R + 50 * 1024}\ns_add_u32 {sW1s}, {sW}, 50\ns_mul_i32 {sW1s}, {sW1s}, 28672\ns_add_u32 {sW1s}, {sW1s}, s54\ns_add_u32 {sW1s}, {sW1s}, 128')
        e(f's_and_b32 s50, {sW}, 1\ns_mul_i32 s50, s50, 896\ns_bfe_u32 s51, {sW}, 0x10001\ns_lshl_b32 s51, s51, 3\ns_add_u32 s50, s50, s51\ns_add_u32 s50, s50, 368\ns_lshl_b32 s50, s50, 10\ns_add_u32 s50, s50, s55')
        e(f's_mul_i32 s51, {sW}, 28672\ns_add_u32 s51, s51, s54\ns_add_u32 s51, s51, 128\ns_cmp_lt_u32 {sW}, 4\ns_cselect_b32 {sPK}, s51, s50')
        def share_addr(v, share, shift, stride, cut, add, col):
            e(f's_lshr_b32 s50, {sR}, {shift}\ns_mul_i32 s50, s50, {share}\ns_mul_i32 s51, {sW}, {share // 8}\ns_add_u32 s50, s50, s51\nv_add_u32 v{v}, s50, v{vL}')
            e(f'v_cmp_gt_u32 vcc, {cut}, v{v}\nv_add_u32 v4, {add}, v{v}\ns_nop 0\nv_cndmask_b32 v{v}, v4, v{v}, vcc\nv_mul_u32_u24 v{v}, {stride}, v{v}\nv_add_u32 v{v}, {col}, v{v}')
            e(f'v_cmp_gt_u32 vcc, {share // 8}, v{vL}\nv_mov_b32 v4, 0x7f000000\ns_nop 0\nv_cndmask_b32 v{v}, v4, v{v}, vcc')
        share_addr(vA1, 88, 4, 3584, 0, 336, 's54'); share_addr(vA2, 184, 3, 1024, 368, 528, 's55')
        e(f's_lshr_b32 s50, {sR}, 4\ns_lshl_b32 s51, {sG}, 1\ns_add_u32 s50, s50, s51\ns_mul_i32 s50, s50, {ARENA}\ns_and_b32 s51, {sR}, 15\ns_mul_i32 s51, s51, {ALINES * 8 * 128}\ns_add_u32 s50, s50, s51')
        e(f's_mul_i32 s51, {sW}, {ALINES * 128}\ns_add_u32 s50, s50, s51\ns_add_u32 s50, s50, {AB}\ns_lshl_b32 s51, {sQT}, 30\ns_add_u32 s50, s50, s51\nv_lshl_add_u32 v{vT}, v{vL}, 7, s50')
        e(f'v_cmp_gt_u32 vcc, {ALINES}, v{vL}\nv_mov_b32 v4, 0x7f000000\ns_nop 0\nv_cndmask_b32 v{vT}, v4, v{vT}, vcc')
        e(f's_lshr_b32 s50, {sR}, 3\ns_lshl_b32 s50, s50, 1\ns_lshl_b32 s51, {sG}, 3\ns_add_u32 s50, s50, s51\ns_and_b32 s51, {sW}, 1\ns_add_u32 s50, s50, s51\ns_lshl_b32 s50, s50, 15')
        e(f's_bfe_u32 s51, {sW}, 0x10001\ns_lshl_b32 s51, s51, 6\ns_add_u32 s50, s50, s51\ns_add_u32 s50, s50, s55')
        e(f'v_and_b32 v4, 31, v{vL}\nv_lshrrev_b32 v5, 5, v{vL}\nv_lshlrev_b32 v4, 10, v4\nv_lshl_add_u32 v4, v5, 3, v4\nv_add_u32 v{vRS}, s50, v4')
        s_qkv_cols(sR)
        e(f's_cmp_lt_u32 {sW}, 4\ns_cselect_b32 s53, s53, s54\ns_lshr_b32 s50, {sR}, 4\ns_lshl_b32 s50, s50, 2\ns_and_b32 s51, {sW}, 3\ns_add_u32 s50, s50, s51\ns_mul_i32 s50, s50, {64 * 3072}\ns_add_u32 s53, s53, s50')
        e(f's_lshl_b32 s50, {sLAY}, 30\ns_add_u32 s53, s53, s50\nv_mul_u32_u24 v{vA3}, 3072, v{vL}\nv_add_u32 v{vA3}, s53, v{vA3}')
        s_fb('s54'); e(f's_and_b32 s55, {sR}, 7\ns_lshl_b32 s55, s55, 7')
    NG = g.lab('ANG'); NQ = g.lab('ANQ')
    gtest = f'v_min_u32 v{vPD}, v{vPD}, v{vPD+1}\nv_cmp_gt_u32 vcc, {sGEP}, v{vPD}'
    gload = f'global_load_dwordx2 v[{vPD}:{vPD+1}], v{vPA}, {WSP} sc1'
    NC = g.lab('ANC')
    send_global_prep(54, 55)
    e(f's_cmp_ge_u32 {sW}, 4\ns_cbranch_scc1 {NC}')
    if 'presend' not in OPT: e(f's_cmp_eq_u32 {sQT}, 0\ns_cbranch_scc1 {NG}')
    send_global(54, 55, 0)
    e(f's_branch {NG}\n{NC}:')
    e(f's_cmp_lg_u32 {sW}, 4\ns_cbranch_scc1 {NG}')
    e(f's_cmp_eq_u32 {sQT}, 0\ns_cbranch_scc1 {NQ}')
    bounded_poll(gload, gtest)
    e(f'{NQ}:')
    poll_local('head')
    e(f'{NG}:'); g.reset_track()
    barrier()
    stamp('att_start', 0)
    tags = []
    def kv_issue(s, tag=True):
        if s > 7: return
        f = ' sc1' if s == 0 else KVNT
        if s: e(f's_add_u32 {sKC}, {sKC}, 8192\ns_and_b32 {sKC}, {sKC}, 0xffff\ns_mov_b32 m0, s67\ns_add_u32 s48, {sKC}, s44')
        else: e('s_mov_b32 m0, s67\ns_nop 0')
        e(f'buffer_load_dwordx4 v{vD}, {SWS}, s48 offen{f} lds')
        e(f's_mov_b32 m0, s68\ns_mov_b32 exec_hi, 0\ns_add_u32 s67, s67, {STG}')
        if s: e(f's_add_u32 s49, s48, {2 * MB}')
        e(f'buffer_load_dwordx4 v{vD}, {SWS}, s49 offen{f} lds')
        e(f's_add_u32 m0, s68, {VP - 512}\ns_add_u32 s68, s68, {STG}')
        e(f'buffer_load_dwordx4 v{vD}, {SWS}, s49 offen offset:512{f} lds')
        e('s_mov_b32 exec_hi, -1')
        if tag: tags.extend([s, s, s])
    e(f'buffer_load_dwordx4 {vr(Q)}, v{vD}, {SWS}, s46 offen sc1')
    kv_issue(0)
    setup2()
    e('s_waitcnt lgkmcnt(0)')
    A0 = g.lab('AS0'); B0 = g.lab('AS1')
    e(f's_cmp_ge_u32 {sW}, 4\ns_cbranch_scc1 {A0}')
    send_global(54, 55, 4)
    g.raw('s_waitcnt vmcnt(1)')
    e(f's_branch {B0}\n{A0}:')
    g.raw('s_waitcnt vmcnt(0)')
    e(f'{B0}:')
    g.vm = []
    barrier()
    base = {'K': 0, 'V': 0}
    def landed(s):
        yo = tags[max(i for i, x in enumerate(tags) if x == s) + 1:]
        n = len([x for x in yo if x > -2])
        assert not (-2 in yo and -3 in yo)
        if n == len(yo): g.force_wait(f'vmcnt({n})')
        else:
            A = g.lab('ALA'); B = g.lab('ALB')
            e(f's_cmp_lg_u32 s47, 0\ns_cbranch_scc1 {A}' if -2 in yo else f's_cmp_lt_u32 {sW}, 4\ns_cbranch_scc1 {A}')
            g.force_wait(f'vmcnt({n})')
            e(f's_branch {B}\n{A}:')
            g.raw(f's_waitcnt vmcnt({len(yo)})')
            e(f'{B}:')
        barrier()
    def kread(t):
        if t > 63: return []
        off = (t // 8) * STG + (t % 8) * 1024 - base['K']
        return [f'ds_read_b128 {vr(KF[t & 1])}, v{vK} offset:{off}']
    def vread(t, half):
        if t > 63: return []
        off = (t // 8) * STG + (2 * (t % 8) + half) * VP - base['V']
        return [f'ds_read_b128 {vr((V0, V1)[half][t & 1])}, v{vV} offset:{off}']
    def qk(t): return f'v_mfma_f32_32x32x16_bf16 {vr(S[t & 1], 16)}, {vr(KF[t & 1])}, {vr(Q)}, 0'
    def pv(t, half): return f'v_smfmac_f32_32x32x32_bf16 {vr(O, 16)}, {vr((V0, V1)[half][t & 1])}, {vr(S[t & 1] + 8 * half, 8)}, v{vI}'
    def attempt(final):
        SK = g.lab('APS'); RT = g.lab('APR')
        e(f's_cmp_lg_u32 s71, 0\ns_cbranch_scc1 {SK}')
        if final: bounded_poll(gload, gtest)
        else:
            g.raw('s_waitcnt vmcnt(0)')
            for x in gtest.split('\n'): g.raw(x)
            g.raw('s_nop 0'); e(f's_cbranch_vccnz {RT}')
        kv_issue(1, False); kv_issue(2, False)
        e('s_mov_b32 s71, 1')
        if not final:
            e(f's_branch {SK}')
            e(f'{RT}:')
            g.raw(gload)
        e(f'{SK}:')
        g.vm = []
    def w1_pref(n):
        e(f's_mov_b32 m0, {sW1d}\ns_add_u32 {sW1d}, {sW1d}, 8192')
        if n == 58: e(f's_cmp_ge_u32 {sW}, 6\ns_cselect_b32 s50, {64 * 28672 + 128}, 0\ns_sub_u32 {sW1s}, {sW1s}, s50')
        if n == 66: e(f's_cmp_lt_u32 {sW}, 6\ns_cselect_b32 s50, {64 * 28672 + 128}, 0\ns_sub_u32 {sW1s}, {sW1s}, s50')
        e(f'buffer_load_dwordx4 v{vW1}, {SW1}, {sW1s} offen lds\ns_add_u32 {sW1s}, {sW1s}, {8 * 28672}'); tags.append(-1)
    def wo_pref(k):
        e(f's_mov_b32 m0, {sWOd}\ns_add_u32 {sWOd}, {sWOd}, 8192')
        e(f'buffer_load_dwordx4 v{vWO}, {SWO}, {sWOs} offen lds\ns_add_u32 {sWOs}, {sWOs}, 65536'); tags.append(-1)
    def dummy(srd, v, f=''):
        g.raw(f'buffer_load_dword v{DUM}, v{v}, {srd}, 0 offen{f}'); tags.append(-1)
    def w2_part(m0_, m1_):
        X = g.lab('AW2')
        e(f's_cmp_eq_u32 s47, 0\ns_cbranch_scc1 {X}')
        for m in range(m0_, m1_):
            g.raw(f'buffer_load_dwordx4 {vr(WR + 4 * m)}, v{vWO}, {SW2}, {sPK} offen'); e(f's_add_u32 {sPK}, {sPK}, 16384'); tags.append(-2)
        e(f'{X}:')
    def r_part(m0_, m1_):
        X = g.lab('ARP')
        e(f's_cmp_ge_u32 {sW}, 4\ns_cbranch_scc1 {X}')
        for m in range(m0_, m1_):
            g.raw(f'buffer_load_dwordx4 {vr(RQ[m])}, v{vW1}, {SW1}, {sPK} offen'); e(f's_add_u32 {sPK}, {sPK}, {4 * 28672}'); tags.append(-3)
        e(f'{X}:')
    def res0():
        X = g.lab('ARS')
        e(f's_cmp_lg_u32 {sLAY}, 0\ns_cbranch_scc1 {X}')
        for q in range(4): g.raw(f'buffer_load_dwordx2 v[{RES + 2*q}:{RES + 2*q + 1}], v{vRS}, {SX}, 0 offen offset:{16 * q}')
        e(f'{X}:')
    jobs = {}
    def job(t, f): jobs.setdefault(t, []).append(f)
    for k in range(11): job(8 + (19 * k) // 10, lambda k=k: w2_part(3 * k, 3 * k + 3))
    for t in (10, 26, 42, 56): job(t, lambda: dummy(SWS, vT, ' sc1'))
    for k in range(8): job(29 + k, lambda k=k: wo_pref(k))
    for t, n in ((37, 50), (45, 58), (46, 66), (53, 74), (54, 82), (60, 90), (61, 98)): job(t, lambda n=n: w1_pref(n))
    job(39, lambda: dummy(SW1, vA1))
    job(55, res0)
    job(50, lambda: dummy(SWQ, vA3))
    for k, (a, b) in enumerate(((0, 3), (3, 6), (6, 9), (9, 11), (11, 13))): job(38 + 2 * k, lambda a=a, b=b: r_part(a, b))
    job(48, lambda: dummy(SW2, vA2))
    lstamp(0)
    run(kread(0) + vread(0, 0) + vread(0, 1) + kread(1) + vread(1, 0))
    g.vm = []
    g.raw(gload)
    e(qk(0))
    run(kread(2))
    e('s_nop 10')
    for t in range(64):
        s0 = S[t & 1]
        ex = [f'v_exp_f32 v{s0 + r}, v{s0 + r}' for r in range(16)]
        e(ex[0]); e(ex[1])
        if t: e(pv(t - 1, 1))
        if 1 <= t <= 6:
            attempt(t == 6)
            if t == 6: tags.extend([1, 1, 1, 2, 2, 2])
        if t == 7:
            landed(1); lstamp(1)
            run(kread(8) + vread(8, 0) + kread(9))
        run(vread(t + 1, 1))
        if t == 7: kv_issue(3)
        if t % 8 == 4 and t > 8:
            s = t // 8 + 1
            if s <= 7: landed(s)
            else: barrier()
            lstamp(s)
            kv_issue(s + 2)
        g.wait_for(vr(KF[(t + 1) & 1]), vr(V0[t & 1]))
        run(ex[2:5])
        if t < 63: e(qk(t + 1))
        if t % 8 == 5 and (t // 8) in (2, 5):
            e(f'v_add_u32 v{vK}, {3 * STG}, v{vK}'); base['K'] += 3 * STG
        if t not in (5, 6): run(kread(t + 3))
        run(jobs.get(t, []))
        run(ex[5:10])
        e(pv(t, 0))
        if t % 8 == 6 and (t // 8) in (2, 5):
            e(f'v_add_u32 v{vV}, {3 * STG}, v{vV}'); base['V'] += 3 * STG
        if t != 6: run(vread(t + 2, 0))
        g.wait_for(vr(V1[t & 1]))
        run(ex[10:16])
    e('s_nop 1')
    e(pv(63, 1))
    stamp('att_loop', 0)
    lstamp_flush([f'att_b{i}' for i in range(9)])
    EPI = g.lab('AEPI')
    e(f'{EPI}:')
    e(f's_and_b32 s46, {sW}, 3\ns_lshl_b32 s46, s46, 15\ns_lshl_b32 s47, {sR}, 10\ns_add_u32 s46, s46, s47\ns_add_u32 s46, s46, s45\ns_add_u32 s46, s46, {sAO}\ns_add_u32 s46, s46, {A_O}')
    e(f'v_mov_b32 v1, {fl(2.0**-30)}\nv_mov_b32 v2, {fl(2.0**64)}\nv_mov_b32 v3, 0x207')
    e('s_nop 3')
    e(f'v_mov_b32 v{O + 9}, v{O + 8}\ns_nop 1\nv_permlane32_swap_b32 v{O + 8}, v{O + 9}\nv_rcp_f32 v0, v{O + 8}')
    e(f'v_cmp_nle_f32 s[50:51], v1, v{O + 8}\nv_cmp_nge_f32 vcc, v2, v{O + 8}\ns_nop 0\ns_or_b64 s[50:51], s[50:51], vcc')
    for r in range(8):
        e(f'v_cmp_class_f32 vcc, v{O + r}, v3\nv_mul_f32 v{O + r}, v0, v{O + r}\ns_or_b64 s[50:51], s[50:51], vcc')
    run(cvt_half(O))
    store_act([f'buffer_store_dwordx4 {vr(O)}, v{vD}, {SWS}, s46 offen'])
    NB = g.lab('ANB')
    if FORCE_SLOW: e('s_mov_b64 s[50:51], -1')
    e(f's_cmp_eq_u64 s[50:51], 0\ns_cbranch_scc1 {NB}')
    e(f'v_mov_b32 v4, {BCAST + 4}\nv_mov_b32 v5, 1\nds_write_b32 v4, v5')
    e(f'{NB}:')
    e('s_waitcnt vmcnt(0) lgkmcnt(0)')
    barrier()
    e(f'v_mov_b32 v4, {BCAST + 4}\nds_read_b32 v5, v4\ns_waitcnt lgkmcnt(0)\nv_readfirstlane_b32 s50, v5\ns_nop 0')
    e(f's_andn2_b32 s50, s50, {sRETRY}\ns_cmp_eq_u32 s50, 0\ns_cbranch_scc1 {DONE}')
    e(f's_mov_b32 {sRETRY}, 1')
    chunks(); consts()
    e(f's_lshl_b32 s44, {sR}, 16\ns_add_u32 s44, s44, {sK}\ns_lshl_b32 s47, {sW}, 10\ns_add_u32 s48, s44, s47\ns_add_u32 s49, s48, {2 * MB}')
    e(f's_add_u32 s67, s47, {KV0}\ns_mul_i32 s68, {sW}, {2 * VP}\ns_add_u32 s68, s68, {KV0 + 8192}')
    for k in range(8):
        kv_issue(0, False); e('s_add_u32 s48, s48, 8192\ns_add_u32 s49, s49, 8192')
    e('s_waitcnt vmcnt(0) lgkmcnt(0)')
    barrier()
    e(f'v_mov_b32 v{NM}, 0xff800000')
    for ps in range(2):
        L = g.lab('AMX'); L2 = g.lab('AMY')
        e('s_mov_b32 s50, 0')
        e(f'v_mov_b32 v100, v{vK}\nv_mov_b32 v101, v{vV}')
        e(f'{L}:')
        e(f'ds_read_b128 {vr(KF[0])}, v100\nds_read_b128 {vr(V0[0])}, v101\nds_read_b128 {vr(V1[0])}, v101 offset:{VP}')
        e(f's_add_u32 s50, s50, 1\ns_and_b32 s51, s50, 7\ns_cmp_eq_u32 s51, 0\ns_cselect_b32 s51, {16 * VP}, 0\ns_cselect_b32 s52, 8192, 0')
        e(f'v_add3_u32 v100, v100, s51, 64\nv_add_u32 v100, 960, v100\nv_add_u32 v101, s52, v101\nv_add_u32 v101, {2 * VP}, v101\ns_waitcnt lgkmcnt(0)')
        e(f'v_mfma_f32_32x32x16_bf16 {vr(S[0], 16)}, {vr(KF[0])}, {vr(Q)}, {vr(NM, 16) if ps else 0}\ns_nop 12')
        if ps == 0:
            for r in range(0, 16, 2): e(f'v_max3_f32 v{NM}, v{NM}, v{r}, v{r + 1}')
        else:
            for r in range(16): e(f'v_exp_f32 v{r}, v{r}')
            e('s_nop 1'); e(pv(0, 0)); e(pv(0, 1))
        e(f's_cmp_lt_u32 s50, 64\ns_cbranch_scc1 {L}')
        if ps == 0:
            e(f'v_mov_b32 v{NM+1}, v{NM}\ns_nop 1\nv_permlane32_swap_b32 v{NM}, v{NM+1}\nv_max_f32 v{NM}, v{NM}, v{NM+1}\nv_sub_f32 v{NM}, 0, v{NM}')
            for r in range(1, 16): e(f'v_mov_b32 v{NM + r}, v{NM}')
    barrier()
    e(f's_lshl_b32 {sWOd}, {sW}, 10\ns_lshl_b32 {sWOs}, {sW}, 13\ns_add_u32 {sWOs}, {sWOs}, s55')
    e(f's_add_u32 {sW1d}, {sWOd}, {W1R + 50 * 1024}\ns_add_u32 {sW1s}, {sW}, 50\ns_mul_i32 {sW1s}, {sW1s}, 28672\ns_add_u32 {sW1s}, {sW1s}, s54\ns_add_u32 {sW1s}, {sW1s}, 128')
    for k in range(8): wo_pref(k)
    for n in range(50, 106, 8): w1_pref(n)
    e(f's_branch {EPI}')
    e(f'{DONE}:'); g.reset_track()

def proj_compute(kind):
    A = 0; ACC = 128; BR = 176; vB = 208; vL = 214; T = 216
    wo = kind == 'wo'
    NS = 16 if wo else 56
    e('s_setprio 1')
    lane(vL)
    e(f's_lshr_b32 s44, {sR}, 3\ns_lshl_b32 s44, s44, 1\ns_lshl_b32 s45, {sG}, 3\ns_add_u32 s44, s44, s45\ns_and_b32 s45, {sW}, 1\ns_add_u32 s44, s44, s45')
    e(f's_lshr_b32 s45, {sW}, 1\ns_and_b32 s47, {sR}, 7\ns_lshl_b32 s47, s47, 1\ns_add_u32 s47, s47, s45')
    e(f'v_lshlrev_b32 v{T}, 4, v{vL}')
    e(f's_lshr_b32 s71, s44, 2\ns_mul_i32 s71, s71, {ARENA}\ns_and_b32 s53, s44, 3')
    if wo: e(f's_lshl_b32 s46, s53, 15\ns_lshl_b32 s48, s45, 14\ns_add_u32 s46, s46, s48\ns_add_u32 s46, s46, {sAO}\ns_add_u32 s46, s46, {A_O}')
    else: e(f's_mul_i32 s46, s53, {112 * 1024}\ns_mul_i32 s48, s45, {56 * 1024}\ns_add_u32 s46, s46, s48\ns_add_u32 s46, s46, {sAH}')
    e('s_add_u32 s46, s46, s71')
    for k in range(8): e(f'v_lshlrev_b32 v{ACC + 2*k}, 16, v{RES + k}\nv_and_b32 v{ACC + 2*k + 1}, 0xffff0000, v{RES + k}')
    tr_lane_parts(vL, T + 4)
    h_ = T + 6
    tr128(vB, T + 4, 's45')
    if wo: e(f's_lshl_b32 s48, s45, 15\nv_add_u32 v{vB}, s48, v{vB}\nv_add_u32 v{vB+1}, s48, v{vB+1}')
    else:
        e(f's_lshl_b32 s48, s45, 15\ns_add_u32 s49, s48, {W2Y}\nv_add_u32 v{vB+2}, s49, v{vB}\nv_add_u32 v{vB+3}, s49, v{vB+1}')
        e(f's_add_u32 s49, s48, {W2Z}\nv_add_u32 v{vB+4}, s49, v{vB}\nv_add_u32 v{vB+5}, s49, v{vB+1}')
        e(f's_mul_i32 s48, s45, 14336\nv_add_u32 v{vB}, s48, v{vB}\nv_add_u32 v{vB+1}, s48, v{vB+1}')
    e(f's_lshl_b32 s48, {sW}, 12\ns_add_u32 s48, s48, {RED}\nv_add_u32 v{T+1}, s48, v{T}\ns_xor_b32 s48, s48, 8192\nv_add_u32 v{T+2}, s48, v{T}')
    barrier()
    stamp(kind + '_start', 0)
    al = ALoader(A, 0, 's46', NS, vaddr=T)
    al.issue(AINIT)
    nfr = [0]; regs = {}
    def where(ks):
        if wo or ks < 7: return 0, ks
        if ks < 23: return 2, ks - 7
        if ks < 39: return 4, ks - 23
        if ks < 46: return 0, ks - 39
        return 2, ks - 46
    def issue(n):
        ks, j = divmod(n, 2)
        if ks >= NS: return
        if not wo and j == 0 and ks in (17, 39):
            e('s_waitcnt lgkmcnt(0)'); barrier()
        b = BR + 4 * (nfr[0] % 8); nfr[0] += 1; regs[n] = b
        a, slot = where(ks)
        e(trrd(b, vB + a + j, slot * 2048, 1024))
    AH = 6
    for n in range(AH): issue(n)
    for n in range(2 * NS):
        ks, j = divmod(n, 2)
        acc = ACC + 16 * j
        li = 2 * NS - 2
        if n >= li: j = 1 - j; acc = ACC + 16 * j
        c = '0' if (ks == 0 and j == 1) else vr(acc, 16)
        e(f'v_mfma_f32_32x32x16_bf16 {vr(acc,16)}, {vr(regs[2 * ks + j])}, {vr(A + 4 * (ks % 32))}, {c}')
        issue(n + AH)
        if al.k < NS and n & 1:
            al.issue(1)
            if wo and al.k == NS: barrier()
    stamp(kind + '_loop', 0)
    e(f's_add_u32 s71, s71, {sAX1 if wo else sAX2}')
    e(f's_lshl_b32 s46, s53, 15\ns_lshl_b32 s48, s47, 11\ns_add_u32 s46, s46, s48\ns_add_u32 s46, s46, s71\ns_add_u32 s46, s46, {A_X}')
    e(f's_lshl_b32 s49, s53, 12\ns_lshl_b32 s48, s47, 8\ns_add_u32 s49, s49, s48\ns_add_u32 s49, s49, s71\ns_add_u32 s49, s49, {A_ST}')
    for q in range(4): e(f'ds_write_b128 v{T+1}, {vr(ACC + 16 + 4*q)} offset:{1024 * q}')
    for k in range(4): e(f'v_mov_b32 v{T+8+k}, 0')
    e(f'v_lshlrev_b32 v{T+1}, 2, v{vL}')
    e('s_waitcnt lgkmcnt(0)')
    barrier()
    for q in range(4): e(f'ds_read_b128 {vr(ACC + 16 + 4*q)}, v{T+2} offset:{1024 * q}')
    for q in range(4):
        for r in range(4 * q, 4 * q + 4): e(f'v_add_f32 v{ACC + r}, v{ACC + r}, v{ACC + 16 + r}')
        for k in range(2 * q, 2 * q + 2): e(f'v_cvt_pk_bf16_f32 v{RES + k}, v{ACC + 2*k}, v{ACC + 2*k + 1}')
    def act_out():
        store_act([f'buffer_store_dwordx4 {vr(RES)}, v{T}, {SWS}, s46 offen', f'buffer_store_dwordx4 {vr(RES + 4)}, v{T}, {SWS}, s46 offen offset:1024'])
        for k in range(8): e(f'v_dot2c_f32_bf16 v{T+8+(k&1)}, {ONES}, v{RES + k}\nv_dot2c_f32_bf16 v{T+10+(k&1)}, v{RES + k}, v{RES + k}')
        e(f's_nop 2\nv_add_f32 v{T+8}, v{T+8}, v{T+9}\nv_add_f32 v{T+10}, v{T+10}, v{T+11}\ns_nop 1')
        e(f'v_permlane32_swap_b32 v{T+8}, v{T+10}\nv_add_f32 v{T+8}, v{T+8}, v{T+10}')
        store_act([f'buffer_store_dword v{T+8}, v{T+1}, {SWS}, s49 offen'])
    if wo: act_out()
    else:
        F = g.lab('W2F'); D = g.lab('W2D')
        e(f's_cmp_lg_u32 {sLAY}, 0\ns_cbranch_scc1 {F}')
        act_out()
        e(f's_branch {D}')
        e(f'{F}:')
        e(f'v_and_b32 v{T+1}, 31, v{vL}\nv_lshlrev_b32 v{T+1}, 10, v{T+1}\nv_lshl_add_u32 v{T+1}, v{h_}, 4, v{T+1}')
        e('s_lshl_b32 s46, s44, 15\ns_lshl_b32 s48, s47, 6\ns_add_u32 s46, s46, s48')
        e(f'v_permlane32_swap_b32 v{RES}, v{RES+2}\nv_permlane32_swap_b32 v{RES+1}, v{RES+3}\nv_permlane32_swap_b32 v{RES+4}, v{RES+6}\nv_permlane32_swap_b32 v{RES+5}, v{RES+7}')
        e(f'buffer_store_dwordx4 {vr(RES)}, v{T+1}, {SOUT}, s46 offen\nbuffer_store_dwordx4 {vr(RES+4)}, v{T+1}, {SOUT}, s46 offen offset:32')
        e(f'{D}:')
    stamp(kind + '_st', 0)
    e('s_setprio 0')
    if wo:
        e(f's_lshl_b32 s48, {sW}, 10\ns_add_u32 s48, s48, {W1R}\nv_add_u32 v{T+3}, s48, v{T}')
        for m in range(8): e(f'ds_write_b128 v{T+3}, {vr(RQ[m])} offset:{4096 * m}')
    e('s_waitcnt vmcnt(0)')
    barrier()
    if wo:
        X = g.lab('WRX')
        for m in range(8, 12): e(f'ds_write_b128 v{T+3}, {vr(RQ[m])} offset:{4096 * m}')
        e(f's_cmp_ge_u32 {sW}, 2\ns_cbranch_scc1 {X}')
        e(f'ds_write_b128 v{T+3}, {vr(RQ[12])} offset:{4096 * 12}')
        e(f'{X}:')
        e('s_waitcnt lgkmcnt(0)')

def wo_phase():
    LH = g.lab('OH'); LD = g.lab('OD'); LE = g.lab('OE')
    e(f's_cmp_ge_u32 {sW}, 4\ns_cbranch_scc1 {LH}')
    proj_compute('wo')
    e(f's_branch {LE}')
    e(f'{LH}:'); g.reset_track()
    e(f's_cmp_ge_u32 {sW}, 5\ns_cbranch_scc1 {LD}')
    arrive_local(); poll_local('all')
    barrier(); barrier(); barrier(); barrier()
    e(f's_branch {LE}')
    e(f'{LD}:'); g.reset_track()
    barrier()
    barrier()
    dma_w1(106, 128)
    N2 = g.lab('ON')
    barrier()
    e('s_waitcnt vmcnt(0)')
    barrier()
    e(f's_cmp_lg_u32 {sLAY}, 0\ns_cbranch_scc1 {N2}\ns_cmp_eq_u32 {sW}, 7\ns_cbranch_scc1 {N2}')
    colsum('w1p')
    e(f'{N2}:')
    e(f'{LE}:'); g.reset_track()

def w2_phase():
    LH = g.lab('TH'); LD = g.lab('TD'); LE = g.lab('TE'); N = g.lab('TN'); J = g.lab('TJ')
    e(f's_cmp_ge_u32 {sW}, 4\ns_cbranch_scc1 {LH}')
    proj_compute('w2')
    e(f's_branch {LE}')
    e(f'{LH}:'); g.reset_track()
    e(f's_cmp_ge_u32 {sW}, 5\ns_cbranch_scc1 {J}')
    arrive_local(); poll_local('half')
    e(f'{J}:')
    barrier()
    barrier()
    w2_regs_put('S')
    barrier()
    e(f's_cmp_lg_u32 {sLAY}, 0\ns_cbranch_scc1 {N}\ns_cmp_eq_u32 {sW}, 4\ns_cbranch_scc1 {N}')
    addr_qkvB(sR); dma_qkvB(10, 21); dma_qkvB(27, 31)
    e(f'{N}:')
    barrier()
    barrier()
    e(f'{LE}:'); g.reset_track()

def w1_compute():
    A = 0; ACC = 128; BR = 192; vB = 216; vL = 224; vA_, vA2, vo = 225, 226, 227; T = 228; EX = 232; EW = [236, 240]
    IDLE = g.lab('W1I'); END = g.lab('W1E')
    lane(vL)
    e(f's_and_b32 s47, {sR}, 15\ns_cmp_ge_u32 s47, 14\ns_cbranch_scc1 {IDLE}')
    e('s_setprio 1')
    e(f's_lshr_b32 s44, {sR}, 4\ns_lshl_b32 s45, {sG}, 1\ns_add_u32 s44, s44, s45\ns_mul_i32 s44, s44, {ARENA}')
    e(f'v_lshlrev_b32 v244, 2, v{vL}\nv_lshlrev_b32 v{vo}, 4, v{vL}')
    e(f's_add_u32 s55, s44, {sAX1}\ns_lshl_b32 s45, {sW}, 12\ns_add_u32 s45, s45, s55\ns_add_u32 s45, s45, {A_ST}\ns_lshl_b32 s48, {sW}, 15\ns_add_u32 s55, s55, s48\ns_add_u32 s55, s55, {A_X}')
    tr_lane_parts(vL, T); tr128(vB, T, 0)
    for k in range(2):
        e(f'v_add_u32 v{vB+2+k}, {W1R}, v{vB+k}\nv_add_u32 v{vB+6+k}, {W1R + 32768}, v{vB+k}\nv_add_u32 v{vB+4+k}, {W1P + 32768}, v{vB+k}\nv_add_u32 v{vB+k}, {W1P}, v{vB+k}')
    e(f'v_and_b32 v245, 31, v{vL}\nv_lshlrev_b32 v245, 2, v245\nv_add_u32 v245, {CS1}, v245')
    barrier()
    stamp('w1_start', 0)
    ST = ACC + 32
    stats_load('s45', ST, 244)
    al = ALoader(A, 0, 's55', 32, vaddr=vo)
    al.issue(AINIT)
    pre = stats_reduce(ST, T, T + 1) + stats_finish(T, T + 1, vA_, EX, vL) + [f'v_mul_f32 v{vA2}, {fl(-LOG2E)}, v{vA_}']
    e(f's_mul_i32 s46, {sW}, {112 * 1024}\ns_lshl_b32 s48, s47, 13\ns_add_u32 s46, s46, s48\ns_add_u32 s46, s46, s44\ns_add_u32 s46, s46, {sAH}\ns_add_u32 s48, s46, 4096')
    seq = [(ks, j) for ks in range(32) for j in range(2)] + [(ks, 2) for ks in range(32)] + [(ks, 3) for ks in range(32)]
    regs = {}; nfr = [0]; AH = 5
    def issue(n):
        if n >= len(seq): return
        if n == 64:
            e('s_waitcnt lgkmcnt(0)'); barrier()
        ks, j = seq[n]
        b = BR + 4 * (nfr[0] % 6); nfr[0] += 1; regs[n] = b
        e(trrd(b, vB + j + 4 * (ks // 16), (ks % 16) * 2048, 1024))
    for n in range(AH): issue(n)
    def mm(j, w, x, c):
        acc = ACC + 16 * j
        return f'v_mfma_f32_32x32x16_bf16 {vr(acc,16)}, {vr(w)}, {vr(x)}, {vr(acc,16) if c else 0}'
    slots = []
    for n, (ks, j) in enumerate(seq):
        def mf(n=n, ks=ks, j=j):
            e(mm(j, regs[n], A + 4 * ks, ks)); issue(n + AH)
            if al.k < 32 and n & 1:
                al.issue(1)
        slots.append([mf])
    def epi(j):
        acc = ACC + 16 * j; o = []
        for q in range(4):
            R = [acc + 4 * q + k for k in range(4)]
            for k in range(4): o.append(f'v_mul_f32 v{T + k}, v{vA2}, v{R[k]}')
            for k in range(4): o += [f'v_exp_f32 v{T + k}, v{T + k}', f'v_mul_f32 v{R[k]}, v{vA_}, v{R[k]}']
            for k in range(4): o.append(f'v_add_f32 v{T + k}, 1.0, v{T + k}')
            for k in range(4): o.append(f'v_rcp_f32 v{T + k}, v{T + k}')
            for k in range(4): o.append(f'v_mul_f32 v{R[k]}, v{R[k]}, v{T + k}')
            if q & 1: o += cvt_half(acc + 8 * (q >> 1))
        so = 's46' if j < 2 else 's48'
        o.append(lambda: store_act([f'buffer_store_dwordx4 {vr(acc)}, v{vo}, {SWS}, {so} offen offset:{2048 * (j & 1)}',
                                    f'buffer_store_dwordx4 {vr(acc + 8)}, v{vo}, {SWS}, {so} offen offset:{2048 * (j & 1) + 1024}']))
        return o
    merge(slots[:64], pre + ext_w(EW[0], 245, 0) + ext_w(EW[1], 245, 128), start=8, per=2)
    e(mm(0, EW[0], EX, 1)); e(mm(1, EW[1], EX, 1))
    lstamp(0)
    f01 = ext_w(EW[0], 245, 256, 2) + ext_w(EW[1], 245, 384, 2) + epi(0) + epi(1); f2 = epi(2)
    cut = (len(f01) + len(f2)) // 2
    merge(slots[64:96], f01[:cut], start=0)
    e(mm(2, EW[0], EX, 1))
    lstamp(1)
    merge(slots[96:128], f01[cut:] + f2, start=0)
    e(mm(3, EW[1], EX, 1))
    barrier()
    stamp('w1_loop', 0)
    e('s_nop 10')
    run(epi(3))
    stamp('w1_st', 0)
    lstamp_flush(['w1_k', 'w1_t2'])
    e('s_setprio 0')
    e('s_waitcnt vmcnt(0)')
    barrier()
    e(f's_branch {END}')
    e(f'{IDLE}:')
    for _ in range(4): barrier()
    e(f'{END}:')

def w1_phase():
    LH = g.lab('UH'); LD = g.lab('UD'); LE = g.lab('UE'); J = g.lab('UJ'); N = g.lab('UN')
    e(f's_cmp_ge_u32 {sW}, 4\ns_cbranch_scc1 {LH}')
    w1_compute()
    e(f's_branch {LE}')
    e(f'{LH}:'); g.reset_track()
    e(f's_cmp_ge_u32 {sW}, 5\ns_cbranch_scc1 {LD}')
    arrive_local(); poll_local('half')
    e(f'{LD}:'); g.reset_track()
    C = g.lab('UC')
    barrier()
    e(f's_cmp_lg_u32 {sLAY}, 0\ns_cbranch_scc1 {C}')
    colsum('w1r')
    e(f'{C}:')
    barrier()
    e(f's_cmp_eq_u32 {sW}, 4\ns_cbranch_scc1 {J}')
    dma_w2('X')
    dma_w2('Y')
    e(f'{J}:')
    barrier()
    w2_regs_put('Z')
    e('s_waitcnt vmcnt(0)')
    barrier()
    e(f'{LE}:'); g.reset_track()

def main():
    K = NAME + '_kernel'
    e(f'{K}:')
    e('s_cmp_ge_u32 s2, 256\ns_cbranch_scc1 L_END')
    e('s_load_dwordx4 s[44:47], s[0:1], 0\ns_load_dwordx2 s[48:49], s[0:1], 16\ns_load_dwordx4 s[52:55], s[0:1], 32')
    e('s_load_dwordx2 s[56:57], s[0:1], 48\ns_load_dwordx2 s[32:33], s[0:1], 56\ns_load_dwordx2 s[34:35], s[0:1], 64')
    e(f'v_lshrrev_b32 v1, 6, v0\ns_and_b32 {sG}, s2, 7\ns_lshr_b32 {sR}, s2, 3\nv_readfirstlane_b32 {sW}, v1')
    e(f's_mov_b32 {sMODE}, 1\ns_mov_b32 {sQT}, 1\ns_mov_b32 {sQS}, 1\ns_mov_b32 {sLAY}, 0\ns_mov_b32 {sEP}, 0\ns_mov_b32 {sGEP}, 0')
    e(f's_mov_b32 {sK}, {KB[0]}\ns_mov_b32 {sAQ}, {AB}')
    e('s_waitcnt lgkmcnt(0)')
    for base, src, size in ((4, 44, 2 * MB), (8, 46, 512 * 3072), (12, 48, 512 * 1024), (16, 52, 512 * 3584), (20, 54, 1792 * 1024), (24, 56, 2 * MB), (28, 34, WS_SIZE)):
        e(f's_mov_b32 s{base}, s{src}\ns_mov_b32 s{base+1}, s{src+1}\ns_mov_b32 s{base+2}, {size}\ns_mov_b32 s{base+3}, 0x20000')
    stamp('begin', 0)
    if 'dbgt' in OPT: e('s_memrealtime s[98:99]\ns_memtime s[88:89]\ns_waitcnt lgkmcnt(0)')
    qkv_phase(True)
    e('L_LAYER:')
    attention()
    if STOP == 'att': e('s_endpgm')
    wo_phase()
    if STOP == 'wo': e('s_waitcnt vmcnt(0)\ns_endpgm')
    w1_phase()
    if STOP == 'w1': e('s_waitcnt vmcnt(0)\ns_endpgm')
    w2_phase()
    if 'dbgt' in OPT:
        e(f's_cmp_eq_u32 {sLAY}, 0\ns_cbranch_scc1 L_NDBG\ns_cmp_ge_u32 s2, 8\ns_cbranch_scc1 L_END')
        e('s_memrealtime s[58:59]\ns_memtime s[56:57]\ns_waitcnt lgkmcnt(0)\ns_sub_u32 s58, s58, s98\ns_sub_u32 s56, s56, s88\ns_lshl_b32 s57, s2, 3')
        e(f'v_mov_b32 v1, s57\nv_mov_b32 v2, s58\nv_mov_b32 v3, s56\nglobal_store_dwordx2 v1, v[2:3], {DBG}\nL_NDBG:')
    e(f's_cmp_lg_u32 {sLAY}, 0\ns_cbranch_scc1 L_END')
    if STOP == 'w2': e('s_waitcnt vmcnt(0)\ns_endpgm')
    e(f's_mov_b32 {sLAY}, 1\ns_andn2_b32 {sDY}, {sQT}, {sMODE}\ns_mov_b32 {sQT}, {sMODE}\ns_mov_b32 {sQS}, {sMODE}')
    e(f's_mov_b32 {sK}, {KB[1]}\ns_mul_i32 {sAQ}, {sMODE}, {5 * ASET}\ns_add_u32 {sAQ}, {sAQ}, {AB}')
    qkv_phase(False)
    e('s_branch L_LAYER')
    e('L_END:')
    e('s_endpgm')
    errs = check_hazards(g.ins) + [x for x in check_waits(g.ins) if not any(f"['v{r}'" in x for r in (60, 100, 102, 103)) and not x.endswith('s[16:19], s97 offen')]
    for x in errs: print(x, file=sys.stderr)
    head = f"""; fused 2-layer (MHA + SiLU FFN) block, one persistent launch: 256 workgroups x 8 waves, one per CU
; @launch grid=(256,1,1) block=(512,1,1) lds={LDS}
.amdgcn_target "amdgcn-amd-amdhsa--gfx950"
.text
.globl {K}
.p2align 8
.type {K},@function
"""
    tail = f""".section .rodata,"a"
.p2align 6
.amdhsa_kernel {K}
  .amdhsa_next_free_vgpr 256
  .amdhsa_next_free_sgpr 100
  .amdhsa_accum_offset 256
  .amdhsa_group_segment_fixed_size 0
  .amdhsa_kernarg_size 72
  .amdhsa_user_sgpr_count 2
  .amdhsa_user_sgpr_kernarg_segment_ptr 1
  .amdhsa_system_sgpr_workgroup_id_x 1
.end_amdhsa_kernel
"""
    out = [a for a in sys.argv[1:] if not a.startswith('--')]
    open(out[0] if out else 'out.s', 'w').write(head + g.text() + tail)
    if PROF:
        import json
        json.dump([[k[0], k[1], v] for k, v in stamp_idx.items()], open('stamps.json', 'w'))
    print('instructions:', sum(1 for i in g.ins if i.op), 'errors:', len(errs), file=sys.stderr)
main()
```

```python
import sys, math, struct
from asmlib import Gen, check_hazards, check_waits

NAME = 'interleave_layers__mha_block__dense_activation_silu__prompt'
OPT = {}
for a in sys.argv[1:]:
    if a.startswith('--'):
        k, _, v = a[2:].partition('='); OPT[k] = v or True
PROF = 'prof' in OPT
STOP = OPT.get('stop')
FORCE_SAFE = 'safe' in OPT
FORCE_DYN = 'dyn' in OPT
FORCE_SLOW = 'slowattn' in OPT
KVNT = ' nt' if 'kvnt' in OPT else ''

MB = 1 << 20
FL_LOC = 0; FL_GLB = 8192; PROFB = 65536
KB = [2 * MB, 6 * MB]
ARENA = 720 * 1024; ASET = 16 * ARENA; ALINES = ARENA // (128 * 128); AB = 10 * MB
A_Q, A_K, A_V, A_O, A_X, A_ST, A_H = 0, 32768, 65536, 458752, 589824, 720896, 0
HT = 112 * 1024
WS_SIZE = AB + 12 * ASET
LDS = 163840
SMALL = 161792
CSQ = SMALL; CS1 = SMALL + 512
BCAST = SMALL + 1536
VST = 160768
XST = 98304
CSQ3 = 147456
ITEM = 131072
VP = 544; STG = 8192 + 16 * VP; KV0 = SMALL - 8 * STG
W1R = 30720; W1P = W1R + 65536
RED = 65536
W2X, W2Y, W2Z = 0, W1P, W1R
RQ = [104, 108, 112, 116, 120, 124, 160, 164, 168, 172, 232, 236, 240]
WR = 104
SX, SWQ, SWO, SW1, SW2, SOUT, SWS = 's[4:7]', 's[8:11]', 's[12:15]', 's[16:19]', 's[20:23]', 's[24:27]', 's[28:31]'
DBG = 's[32:33]'; WSP = 's[34:35]'
sW, sG, sR, sMODE, sLAY, sEP, sGEP = 's36', 's37', 's38', 's39', 's40', 's41', 's42'
sRETRY = 's43'
sK, sAQ, sAO, sAX1, sAH, sAX2 = 's60', 's61', 's62', 's63', 's64', 's69'
sDY = 's90'; sQS = 's91'
sGQ = 's70'
sR0 = 's65'; sQT = 's66'
RES = 248
ONES = '0x3f803f80'
LOG2E = 1.4426950408889634

g = Gen()
e = g.e
def vr(a, n=4): return f'v[{a}:{a+n-1}]'
def fl(x): return hex(struct.unpack('<I', struct.pack('<f', x))[0])
def run(lst):
    for x in lst:
        if callable(x): x()
        else: e(x)
def lane(v): e(f'v_mbcnt_lo_u32_b32 v{v}, -1, 0\nv_mbcnt_hi_u32_b32 v{v}, -1, v{v}')
def barrier(): e('s_barrier')

stamp_idx = {}
def _sidx(name, role):
    key = (name, role)
    if key not in stamp_idx: stamp_idx[key] = len([k for k in stamp_idx if k[1] == role])
    assert stamp_idx[key] < 64
    return stamp_idx[key]
def _sstore(idx, role, src):
    e(f's_lshl_b32 s57, s2, 10\ns_mul_i32 s56, {sLAY}, 256\ns_add_u32 s57, s57, s56\ns_add_u32 s57, s57, {PROFB + role * 512 + idx * 4}')
    e('s_waitcnt lgkmcnt(0)')
    e(f'v_mov_b32 v246, s57\nv_mov_b32 v247, {src}')
    e(f'global_store_dword v246, v247, {WSP}')
def stamp(name, role):
    if 'tt' in OPT and name in ('begin', 'w2_st'):
        e('s_memrealtime s[58:59]'); _sstore(0 if name == 'begin' else 1, role, 's58'); return
    if not PROF: return
    e('s_memrealtime s[58:59]'); _sstore(_sidx(name, role), role, 's58')
def lstamp(i):
    if PROF: e(f's_memrealtime s[{72 + 2*i}:{73 + 2*i}]')
def lstamp_flush(names):
    if not PROF: return
    for i, n in enumerate(names): _sstore(_sidx(n, 0), 0, f's{72 + 2*i}')

def merge(slots, fill, start=0, per=None):
    n = len(slots) - start
    k = 0
    for i, s in enumerate(slots):
        run(s)
        if i >= start:
            tgt = len(fill) if i == len(slots) - 1 else (min(len(fill), (i - start + 1) * per) if per else (len(fill) * (i - start + 1)) // n)
            run(fill[k:tgt]); k = max(k, tgt)

def bounded_poll(load, test):
    L = g.lab('POLL'); X = g.lab('POLLX')
    e('s_mov_b32 s50, 0x40000')
    e(f'{L}:')
    e(load)
    e('s_waitcnt vmcnt(0)')
    e(test)
    e(f's_sub_u32 s50, s50, 1\ns_cmp_eq_u32 s50, 0\ns_cbranch_scc1 {X}')
    e(f's_cbranch_vccnz {L}')
    e(f'{X}:')

def flag_set(ph, va, vb, owned=False):
    A = g.lab('ARS'); B = g.lab('ARD')
    if owned: e(f's_and_b32 s51, {sW}, 3\ns_lshl_b32 s51, s51, 1\ns_lshr_b32 s50, {sW}, 2\ns_add_u32 s51, s51, s50\ns_lshl_b32 s51, s51, 7')
    else: e(f's_lshl_b32 s51, {sW}, 7')
    e(f's_lshl_b32 s50, {sG}, 10\ns_add_u32 s50, s50, s51\ns_lshl_b32 s51, {sR}, 2\ns_add_u32 s50, s50, s51\ns_add_u32 s51, {sEP}, {ph}')
    e(f'v_mov_b32 v{va}, s50\nv_mov_b32 v{vb}, s51')
    return lambda: (e('s_mov_b64 exec, 1'), store_act([f'global_store_dword v{va}, v{vb}, {WSP}']), e('s_mov_b64 exec, -1'))

def flag_wait_prep(kind, va, vt):
    lane(va)
    e(f's_lshl_b32 s50, {sG}, 10')
    if kind == 'wo':
        e(f's_lshr_b32 s51, {sR}, 3\ns_lshl_b32 s51, s51, 1\ns_and_b32 s52, {sW}, 1\ns_add_u32 s51, s51, s52\ns_lshl_b32 s51, s51, 7\ns_add_u32 s50, s50, s51')
        e(f's_lshr_b32 s51, {sW}, 1\ns_lshl_b32 s51, s51, 6\ns_add_u32 s50, s50, s51\nv_and_b32 v{va}, 15, v{va}\nv_lshl_add_u32 v{va}, v{va}, 2, s50')
    elif kind == 'x':
        e(f's_and_b32 s51, {sW}, 1\ns_lshl_b32 s51, s51, 7\ns_add_u32 s50, s50, s51\ns_lshr_b32 s51, {sR}, 4\ns_lshl_b32 s51, s51, 1\ns_lshr_b32 s52, {sW}, 1\ns_add_u32 s51, s51, s52\ns_lshl_b32 s51, s51, 5\ns_add_u32 s50, s50, s51')
        e(f'v_bfe_u32 v{vt}, v{va}, 3, 1\nv_and_b32 v{va}, 7, v{va}\nv_lshl_add_u32 v{va}, v{va}, 2, s50\nv_lshl_add_u32 v{va}, v{vt}, 8, v{va}')
    elif kind == 'w2':
        e(f's_bfe_u32 s51, {sR}, 0x10003\ns_lshl_b32 s51, s51, 1\ns_and_b32 s52, {sW}, 1\ns_add_u32 s51, s51, s52\ns_lshl_b32 s51, s51, 7\ns_add_u32 s50, s50, s51')
        e(f's_and_b32 s51, {sR}, 16\ns_lshl_b32 s51, s51, 2\ns_add_u32 s50, s50, s51\ns_lshr_b32 s51, {sW}, 1\ns_mul_i32 s51, s51, 28\ns_add_u32 s50, s50, s51')
        e(f'v_and_b32 v{va}, 7, v{va}\nv_min_u32 v{va}, 6, v{va}\nv_lshl_add_u32 v{va}, v{va}, 2, s50')
    else:
        e(f's_and_b32 s51, {sW}, 3\ns_lshl_b32 s51, s51, 7\ns_add_u32 s50, s50, s51\ns_lshr_b32 s51, {sR}, 2\ns_lshl_b32 s51, s51, 3\ns_add_u32 s50, s50, s51')
        e(f'v_bfe_u32 v{vt}, v{va}, 1, 1\nv_and_b32 v{va}, 1, v{va}\nv_lshl_add_u32 v{va}, v{va}, 2, s50\nv_lshl_add_u32 v{va}, v{vt}, 6, v{va}')
def flag_wait(ph, va, vt):
    e(f's_add_u32 s51, {sEP}, {ph}')
    bounded_poll(f'global_load_dword v{vt}, v{va}, {WSP} sc1', f'v_cmp_gt_u32 vcc, s51, v{vt}')
P_QKV, P_ATT, P_WO, P_W1, P_W2 = 1, 2, 3, 4, 5

def send_global_prep(va, vb):
    lane(va)
    e(f's_and_b32 s50, {sR0}, 15\ns_lshr_b32 s50, s50, 1\ns_lshl_b32 s50, s50, 9\ns_lshl_b32 s51, {sGQ}, 6\ns_add_u32 s50, s50, s51')
    e(f's_lshr_b32 s51, {sR0}, 4\ns_lshl_b32 s51, s51, 5\ns_add_u32 s50, s50, s51\ns_and_b32 s51, {sR0}, 1\ns_lshl_b32 s51, s51, 4\ns_add_u32 s50, s50, s51')
    e(f's_lshl_b32 s51, {sW}, 2\ns_add_u32 s50, s50, s51\ns_add_u32 s50, s50, {FL_GLB}')
    e(f'v_lshl_add_u32 v{va}, v{va}, 12, s50\nv_mov_b32 v{vb}, {sGEP}')
def send_global(va, vb, n):
    g.raw(f's_waitcnt vmcnt({n})')
    e('s_mov_b64 exec, 0xff')
    g.raw(f'global_store_dword v{va}, v{vb}, {WSP} sc1')
    e('s_mov_b64 exec, -1')

def register_start():
    e('s_getreg_b32 s44, hwreg(HW_REG_XCC_ID)\ns_and_b32 s44, s44, 15')
    e(f's_lshl_b32 s50, s2, 5')
    e(f's_lshl_b32 s51, s2, 7\ns_add_u32 s51, s51, {FL_GLB}')
    lane(2)
    e('v_lshl_add_u32 v1, v2, 2, s50\nv_lshl_add_u32 v2, v2, 2, s51\nv_mov_b32 v3, 0')
    e('s_mov_b32 exec_hi, 0')
    e(f'global_store_dword v2, v3, {WSP} sc1')
    e('s_mov_b64 exec, 0xff')
    e(f'global_store_dword v1, v3, {WSP} offset:{FL_LOC} sc1')
    e('s_mov_b64 exec, 1')
    e('s_waitcnt vmcnt(0)')
    e('s_and_b32 s50, s2, 3\ns_lshl_b32 s50, s50, 3\ns_add_u32 s51, s44, 1\ns_lshl_b32 s51, s51, s50\ns_and_b32 s50, s2, 0xfc')
    e('v_mov_b32 v1, s50\nv_mov_b32 v2, s51')
    e(f'global_atomic_or v1, v2, {DBG} sc1')
    e('s_mov_b64 exec, -1')

def register_resolve():
    lane(3)
    e('v_lshlrev_b32 v5, 2, v3')
    test = ('v_and_b32 v6, 0xff, v4\nv_bfe_u32 v7, v4, 8, 8\nv_bfe_u32 v8, v4, 16, 8\nv_lshrrev_b32 v9, 24, v4\n'
            'v_min_u32 v10, v6, v7\nv_min3_u32 v10, v10, v8, v9\nv_cmp_eq_u32 vcc, 0, v10')
    bounded_poll(f'global_load_dword v4, v5, {DBG} sc1', test)
    e(f's_mov_b32 {sMODE}, {1 if FORCE_SAFE else 0}')
    for x in range(8):
        e('s_mov_b32 s52, 0')
        for b in range(4):
            e(f'v_cmp_eq_u32 vcc, {x + 1}, v{6 + b}\ns_nop 0\ns_bcnt1_i32_b64 s51, vcc\ns_add_u32 s52, s52, s51')
        e(f's_cmp_lg_u32 s52, 32\ns_cselect_b32 s51, 1, 0\ns_or_b32 {sMODE}, {sMODE}, s51')
    e('s_add_u32 s53, s44, 1\ns_mov_b32 s52, 0')
    for b in range(4):
        e(f'v_add_u32 v10, {b}, v5\nv_cmp_gt_u32 s[54:55], s2, v10\nv_cmp_eq_u32 vcc, s53, v{6 + b}\ns_nop 0\ns_and_b64 vcc, vcc, s[54:55]\ns_bcnt1_i32_b64 s51, vcc\ns_add_u32 s52, s52, s51')
    e('v_readlane_b32 s54, v4, 0\nv_readlane_b32 s55, v4, 1\nv_and_b32 v10, 1, v3\nv_cmp_eq_u32 vcc, 0, v10\nv_mov_b32 v11, s54\nv_mov_b32 v12, s55\nv_cndmask_b32 v11, v12, v11, vcc')
    e(f'v_cmp_ne_u32 vcc, v11, v4\ns_nop 0\ns_cmp_lg_u64 vcc, 0\ns_cselect_b32 {sQT}, 1, {1 if FORCE_DYN else 0}')
    e(f's_andn2_b32 s51, {sQT}, {sMODE}\ns_or_b32 {sQT}, {sQT}, {sMODE}')
    e(f's_cmp_lg_u32 s51, 0\ns_cselect_b32 {sG}, s44, {sG}\ns_cselect_b32 {sR}, s52, {sR}')
    e(f's_lshl_b32 s50, {sR}, 8\ns_lshl_b32 s51, {sMODE}, 16\ns_or_b32 s50, s50, s51\ns_lshl_b32 s51, {sQT}, 17\ns_or_b32 s50, s50, s51\ns_or_b32 s50, s50, {sG}')
    e(f'v_mov_b32 v1, {BCAST}\nv_mov_b32 v2, s50\nds_write_b32 v1, v2\ns_waitcnt lgkmcnt(0)')

def bcast_issue(v): return [f'v_mov_b32 v{v}, {BCAST}', f'ds_read_b32 v{v}, v{v}']
def bcast_take(v):
    return [f'v_readfirstlane_b32 s50, v{v}', 's_nop 0', f's_and_b32 {sG}, s50, 7', f's_bfe_u32 {sR}, s50, 0x50008', f's_bfe_u32 {sMODE}, s50, 0x10010', f's_bfe_u32 {sQT}, s50, 0x10011']

def store_act(lines, flag=sMODE):
    A = g.lab('STS'); B = g.lab('STD')
    for l in lines:
        if l.startswith(('buffer', 'global')): g.wait_for(*[t.strip() for t in l.split(None, 1)[1].split(',')[:2]])
    e(f's_cmp_lg_u32 {flag}, 0\ns_cbranch_scc1 {A}')
    save = list(g.vm)
    for l in lines: e(l)
    e(f's_branch {B}')
    e(f'{A}:')
    g.vm = save
    for l in lines: e(l + (' sc1' if l.startswith(('buffer', 'global')) else ''))
    e(f'{B}:')

def dma_loop(n, first, stride, body, cnt='s52'):
    L = g.lab('DL'); X = g.lab('DX')
    e(f's_mov_b32 {cnt}, {first}')
    e(f's_cmp_ge_u32 {cnt}, {n}\ns_cbranch_scc1 {X}')
    e(f'{L}:')
    body()
    e(f's_add_u32 {cnt}, {cnt}, {stride}\ns_cmp_lt_u32 {cnt}, {n}\ns_cbranch_scc1 {L}')
    e(f'{X}:')

def s_qkv_cols(r):
    e(f's_and_b32 s50, {r}, 15\ns_lshr_b32 s51, s50, 1\ns_and_b32 s50, s50, 1')
    e('s_lshl_b32 s53, s50, 10\ns_lshl_b32 s54, s51, 7\ns_add_u32 s53, s53, s54')
    e('s_lshl_b32 s55, s50, 6\ns_add_u32 s54, s54, s55\ns_add_u32 s54, s54, 2048')

def addr_qkvB(r):
    lane(9)
    s_qkv_cols(r)
    e('s_sub_u32 s54, s54, 128')
    for i in range(3):
        e(f'v_add_u32 v13, {64 * i}, v9\nv_mul_u32_u24 v14, 171, v13\nv_lshrrev_b32 v14, 11, v14')
        e('v_mul_u32_u24 v15, 12, v14\nv_sub_u32 v15, v13, v15')
        e('v_mov_b32 v16, s53\nv_mov_b32 v17, s54\nv_cmp_gt_u32 vcc, 8, v15\ns_nop 1\nv_cndmask_b32 v16, v17, v16, vcc')
        e(f'v_lshl_add_u32 v16, v15, 4, v16\nv_mul_u32_u24 v14, 3072, v14\nv_add_u32 v{10 + i}, v14, v16')
def qkvB_block(ks):
    e(f's_mul_i32 s53, {ks}, 3072\ns_mul_i32 s54, {ks}, 49152')
    for i in range(3):
        e(f's_add_u32 m0, s53, {1024 * i}\ns_nop 0')
        e(f'buffer_load_dwordx4 v{10 + i}, {SWQ}, s54 offen lds')
def dma_qkvB(lo, hi):
    e(f's_add_u32 s56, {sW}, {lo - 5}')
    dma_loop(hi, 's56', 3, lambda: qkvB_block('s52'))

def addr_128(v, stride):
    lane(v)
    e(f'v_lshrrev_b32 v13, 3, v{v}\nv_and_b32 v14, 7, v{v}\nv_lshlrev_b32 v15, 1, v13\nv_and_b32 v15, 4, v15\nv_xor_b32 v14, v14, v15')
    e(f'v_mul_u32_u24 v13, {stride}, v13\nv_lshl_add_u32 v{v}, v14, 4, v13')

def s_fb(dst):
    e(f's_and_b32 {dst}, {sR}, 15\ns_min_u32 {dst}, {dst}, 13\ns_lshl_b32 {dst}, {dst}, 8')

def w1_instr(n, v, sfb):
    e(f's_lshl_b32 s53, {n}, 10\ns_add_u32 m0, s53, {W1R}\ns_and_b32 s53, {n}, 63\ns_mul_i32 s53, s53, 28672\ns_add_u32 s53, s53, {sfb}')
    e(f's_cmp_lt_u32 {n}, 64\ns_cselect_b32 s51, 128, 0\ns_add_u32 s53, s53, s51')
    e(f'buffer_load_dwordx4 v{v}, {SW1}, s53 offen lds')
def dma_w1(lo, hi):
    addr_128(9, 3584); s_fb('s55')
    e(f's_add_u32 s56, {sW}, {lo - 5}')
    dma_loop(hi, 's56', 3, lambda: w1_instr('s52', 9, 's55'))

def dma_w2(region):
    addr_128(9, 1024)
    e(f's_and_b32 s55, {sR}, 7\ns_lshl_b32 s55, s55, 7\ns_sub_u32 s56, {sW}, 5')
    def bx():
        e(f's_lshl_b32 m0, s52, 10\ns_lshl_b32 s54, s52, 13\ns_add_u32 s54, s54, s55\ns_cmp_ge_u32 s52, 14\ns_cselect_b32 s51, {(896 - 112) * 1024}, 0\ns_add_u32 s54, s54, s51')
        e(f'buffer_load_dwordx4 v9, {SW2}, s54 offen lds')
    def by():
        e(f's_lshl_b32 s53, s52, 10\ns_add_u32 m0, s53, {W2Y}\ns_lshl_b32 s54, s52, 13\ns_add_u32 s54, s54, s55\ns_cmp_ge_u32 s52, 32\ns_cselect_b32 s51, {(896 - 256) * 1024}, 0\ns_add_u32 s54, s54, s51\ns_add_u32 s54, s54, {112 * 1024}')
        e(f'buffer_load_dwordx4 v9, {SW2}, s54 offen lds')
    if region == 'X': dma_loop(28, 's56', 3, bx)
    else: dma_loop(64, 's56', 3, by)

def w2_regs_load():
    addr_128(9, 1024)
    e(f's_and_b32 s50, {sW}, 1\ns_mul_i32 s50, s50, 896\ns_bfe_u32 s51, {sW}, 0x10001\ns_lshl_b32 s51, s51, 3\ns_add_u32 s50, s50, s51\ns_add_u32 s50, s50, 368\ns_lshl_b32 s50, s50, 10')
    e(f's_and_b32 s51, {sR}, 7\ns_lshl_b32 s51, s51, 7\ns_add_u32 s50, s50, s51')
    for m in range(33):
        e(f'buffer_load_dwordx4 {vr(WR + 4 * m)}, v9, {SW2}, s50 offen\ns_add_u32 s50, s50, 16384')
def w2_regs_put(part):
    lane(9)
    e(f's_and_b32 s50, {sW}, 1\ns_bfe_u32 s51, {sW}, 0x10001\ns_lshl_b32 s51, s51, 10\nv_lshl_add_u32 v9, v9, 4, s51')
    if part == 'Z':
        e(f's_lshl_b32 s50, s50, 15\ns_add_u32 s50, s50, {W2Z}\nv_add_u32 v10, s50, v9')
        for m in range(16): e(f'ds_write_b128 v10, {vr(WR + 4 * m)} offset:{2048 * m}')
    else:
        e(f's_mul_i32 s51, s50, 14336\nv_add_u32 v10, s51, v9\ns_lshl_b32 s50, s50, 15\ns_add_u32 s50, s50, {W2Y}\nv_add_u32 v11, s50, v9')
        for m in range(17):
            e(f'ds_write_b128 v{10 if m < 7 else 11}, {vr(WR + 64 + 4 * m)} offset:{2048 * (m if m < 7 else m - 7)}\ns_waitcnt lgkmcnt(0)')
    e('s_waitcnt lgkmcnt(0)')

def tr_lane_parts(vl, t0):
    e(f'v_bfe_u32 v{t0}, v{vl}, 2, 2\nv_bfe_u32 v{t0+1}, v{vl}, 4, 1\nv_lshlrev_b32 v{t0+1}, 5, v{t0+1}\nv_and_b32 v{t0+2}, 3, v{vl}')
    e(f'v_lshl_add_u32 v{t0+1}, v{t0+2}, 3, v{t0+1}\nv_lshrrev_b32 v{t0+2}, 5, v{vl}')
def tr128(dst, t0, ft):
    e(f'v_lshl_add_u32 v{dst}, v{t0+2}, 2, v{t0}\nv_lshlrev_b32 v{dst}, 7, v{dst}\nv_add_u32 v{dst}, v{dst}, v{t0+1}')
    e(f'v_lshrrev_b32 v{dst+1}, 1, v{t0}\nv_xor_b32 v{dst+1}, {ft}, v{dst+1}\nv_lshl_add_u32 v{dst}, v{dst+1}, 6, v{dst}\nv_xor_b32 v{dst+1}, 64, v{dst}')
def trrd(b, a, o, second): return f'ds_read_b64_tr_b16 v[{b}:{b+1}], v{a} offset:{o}\nds_read_b64_tr_b16 v[{b+2}:{b+3}], v{a} offset:{o + second}'

def qkv0_loader():
    SK = g.lab('QSK'); SK2 = g.lab('QSK')
    e('s_setprio 3')
    addr_qkvB(sR)
    e(f's_sub_u32 s52, {sW}, 6\ns_cmp_eq_u32 {sW}, 5\ns_cbranch_scc1 {SK}')
    qkvB_block('s52')
    e(f'{SK}:')
    LA = int(OPT.get('la', 8))
    for i in range(1, LA): e('s_add_u32 s52, s52, 3'); qkvB_block('s52')
    tr_lane_parts(9, 13)
    e(f'v_lshl_add_u32 v16, v15, 2, v13\nv_mul_u32_u24 v16, 192, v16\nv_add_u32 v16, v16, v14\ns_sub_u32 s50, {sW}, 3\ns_mul_i32 s50, s50, 3072')
    e(f's_max_u32 s51, {sW}, 6\ns_sub_u32 s51, s51, 6\ns_mul_i32 s51, s51, 3072\nv_add_u32 v36, s51, v16\nv_add_u32 v37, s50, v16\nv_add_u32 v38, {5 * 9216}, v37')
    for k in range(12): e(f'v_mov_b32 v{40 + k}, 0')
    for i in range(11):
        if i + LA < 11: e('s_add_u32 s52, s52, 3'); qkvB_block('s52')
        g.raw(f's_waitcnt vmcnt({3 * min(LA, 10 - i)})')
        if i == 1: lstamp(0)
        if i == 10: lstamp(1)
        if i == 0: e(f's_cmp_eq_u32 {sW}, 5\ns_cbranch_scc1 {SK2}')
        for j in range(3): e(trrd(24 + 4 * j, 36 + (i + 4) // 5, ((i - 1) % 5 if i else 0) * 9216 + 64 * j, 1536))
        for j in range(3):
            for k in range(4): e(f'v_dot2c_f32_bf16 v{40 + 4*j + k}, {ONES}, v{24 + 4*j + k}')
        if i == 0: e(f'{SK2}:')
    e('s_setprio 0')
    e(f's_mul_i32 s52, {sW}, 384\ns_add_u32 s52, s52, {CSQ3 - 5 * 384}\nv_and_b32 v9, 31, v9\nv_lshl_add_u32 v9, v9, 2, s52')
    for j in range(3): e(f'v_add_f32 v{40 + 4*j}, v{40 + 4*j}, v{41 + 4*j}\nv_add_f32 v{42 + 4*j}, v{42 + 4*j}, v{43 + 4*j}\nv_add_f32 v{40 + 4*j}, v{40 + 4*j}, v{42 + 4*j}')
    for j in range(3): e(f'v_mov_b32 v{41 + 4*j}, v{40 + 4*j}')
    e('s_nop 0')
    for j in range(3): e(f'v_permlane32_swap_b32 v{40 + 4*j}, v{41 + 4*j}\nv_add_f32 v{40 + 4*j}, v{40 + 4*j}, v{41 + 4*j}\nds_write_b32 v9, v{40 + 4*j} offset:{128 * j}')
    e('s_waitcnt lgkmcnt(0)')
    stamp('q0_ddone', 1)

def colsum_part(kss, a0, step, second):
    kss = list(kss)
    def rd(i): e(trrd(20 + 4 * (i % 5), a0 + kss[i] // 16, (kss[i] % 16) * step, second))
    for i in range(min(4, len(kss))): rd(i)
    for i in range(len(kss)):
        if i + 4 < len(kss): rd(i + 4)
        for j in range(4): e(f'v_dot2c_f32_bf16 v{44 + 4 * (i & 1) + j}, {ONES}, v{20 + 4 * (i % 5) + j}')
def colsum_end(tab):
    e('s_nop 2')
    for st in (4, 2, 1):
        for j in range(st): e(f'v_add_f32 v{44 + j}, v{44 + j}, v{44 + j + st}')
    lane(9)
    e('v_mov_b32 v45, v44\ns_nop 1\nv_permlane32_swap_b32 v44, v45\nv_add_f32 v44, v44, v45')
    e(f'v_and_b32 v9, 31, v9\ns_lshl_b32 s50, s50, 7\ns_add_u32 s50, s50, {tab}\nv_lshl_add_u32 v9, v9, 2, s50\nds_write_b32 v9, v44\ns_waitcnt lgkmcnt(0)')
def colsum_qkv():
    lane(9); tr_lane_parts(9, 13)
    e(f's_sub_u32 s50, {sW}, 5\ns_lshl_b32 s51, s50, 6')
    e('v_lshl_add_u32 v16, v15, 2, v13\nv_mul_u32_u24 v16, 192, v16\nv_add3_u32 v16, v16, v14, s51\nv_add_u32 v17, 49152, v16')
    for k in range(8): e(f'v_mov_b32 v{44 + k}, 0')
    colsum_part(range(32), 16, 3072, 8 * 192)
    colsum_end(CSQ)
def colsum_w1(window):
    X = g.lab('CW'); R = g.lab('CW'); J = g.lab('CW')
    e(f's_cmp_lg_u32 {sLAY}, 0\ns_cbranch_scc1 {X}')
    if window == 0:
        lane(9); tr_lane_parts(9, 13)
        e(f's_and_b32 s51, {sW}, 1')
        tr128(52, 13, 's51')
        e(f's_cmp_lt_u32 {sW}, 6\ns_cselect_b32 s51, 65536, 0\ns_add_u32 s51, s51, {W1R}\nv_add_u32 v52, s51, v52\nv_add_u32 v53, 32768, v52')
        for k in range(8): e(f'v_mov_b32 v{44 + k}, 0')
    e(f's_cmp_ge_u32 {sW}, 6\ns_cbranch_scc1 {R}')
    colsum_part(range(21) if window == 0 else range(21, 32), 52, 2048, 1024)
    e(f's_branch {J}\n{R}:')
    colsum_part(range(25, 32) if window == 0 else range(25), 52, 2048, 1024)
    e(f'{J}:')
    if window == 1:
        e(f's_sub_u32 s50, {sW}, 4'); colsum_end(CS1)
    e(f'{X}:')

def stats_finish(vS, vQ, vA, ext, vL):
    return [f'v_mul_f32 v{vS}, {fl(-1/512)}, v{vS}', f'v_mul_f32 v{vQ}, {fl(1/512)}, v{vQ}',
            f'v_fma_f32 v{vQ}, -v{vS}, v{vS}, v{vQ}', f'v_max_f32 v{vQ}, 0, v{vQ}', f'v_add_f32 v{vQ}, {fl(1e-5)}, v{vQ}',
            f'v_rsq_f32 v{vA}, v{vQ}', f'v_cmp_gt_u32 vcc, 32, v{vL}',
            f'v_cvt_pk_bf16_f32 v{ext}, v{vS}, v{vS}', f'v_lshlrev_b32 v{vQ}, 16, v{ext}', f'v_sub_f32 v{vS}, v{vS}, v{vQ}',
            f'v_cvt_pk_bf16_f32 v{ext+1}, v{vS}, 0', f'v_cndmask_b32 v{ext}, 0, v{ext}, vcc', f'v_cndmask_b32 v{ext+1}, 0, v{ext+1}, vcc',
            f'v_mov_b32 v{ext+2}, 0', f'v_mov_b32 v{ext+3}, 0']
def ext_w(ext, vaddr, off, three=False):
    o = [f'ds_read_b32 v{ext+2}, v{vaddr} offset:{off}']
    if three == 2: o += [f'ds_read_b32 v{ext}, v{vaddr} offset:{off + 256}', f'v_add_f32 v{ext+2}, v{ext+2}, v{ext}']
    elif three: o += [f'ds_read_b32 v{ext}, v{vaddr} offset:{off + 384}', f'ds_read_b32 v{ext+1}, v{vaddr} offset:{off + 768}', f'v_add_f32 v{ext+2}, v{ext+2}, v{ext}', f'v_add_f32 v{ext+2}, v{ext+2}, v{ext+1}']
    return o + [f'v_cvt_pk_bf16_f32 v{ext+1}, v{ext+2}, 0', f'v_lshlrev_b32 v{ext+3}, 16, v{ext+1}',
            f'v_sub_f32 v{ext+3}, v{ext+2}, v{ext+3}', f'v_cvt_pk_bf16_f32 v{ext}, v{ext+2}, v{ext+3}', f'v_mov_b32 v{ext+2}, 0', f'v_mov_b32 v{ext+3}, 0']
def stats_load(sbase, t0, vOff4):
    for ft in range(16): e(f'buffer_load_dword v{t0 + ft}, v{vOff4}, {SWS}, {sbase} offen offset:{ft * 256} sc1')
def stats_reduce(t0, vS, vQ):
    o = []
    for s in (8, 4, 2, 1):
        for k in range(s): o.append(f'v_add_f32 v{t0 + k}, v{t0 + k}, v{t0 + k + s}')
    o += [f'v_mov_b32 v{vS}, v{t0}', f'v_mov_b32 v{vQ}, v{t0}', 's_nop 1', f'v_permlane32_swap_b32 v{vS}, v{vQ}']
    return o
def cvt_half(acc):
    return [f'v_cvt_pk_bf16_f32 v{acc + k}, v{acc + 2 * k}, v{acc + 2 * k + 1}' for k in range(4)]

AINIT = int(OPT.get('ainit', 10))
class ALoader:
    def __init__(self, A, _, sreg, n, vaddr): self.A, self.s, self.n, self.v, self.k = A, sreg, n, vaddr, 0
    def issue(self, cnt, limit=None):
        for _ in range(cnt):
            ks = self.k
            if ks >= self.n or (limit is not None and ks >= limit): return
            self.k += 1
            e(f'buffer_load_dwordx4 {vr(self.A + 4 * (ks % 32))}, v{self.v}, {SWS}, {self.s} offen offset:{1024 * (ks & 3)} sc1')
            if (ks & 3) == 3: e(f's_add_u32 {self.s}, {self.s}, 4096')

def qkv_compute(first):
    A = 0; ACC = 128; BR = 176; vB = 208; vL = 212; vA_ = 213; vo = 214; vo2 = 215; T = 216; vAo = 159
    EX = 232; EW = [236, 240, 244]
    e('s_setprio 1')
    lane(vL)
    e(f's_lshr_b32 s44, {sR}, 4\ns_lshl_b32 s45, {sG}, 1\ns_add_u32 s44, s44, s45\ns_mul_i32 s71, s44, {ARENA}\ns_lshl_b32 s44, s44, 2\ns_add_u32 s44, s44, {sW}')
    if first:
        e(f'v_lshrrev_b32 v{T}, 3, v{vL}\nv_and_b32 v{T+1}, 7, v{vL}\nv_lshlrev_b32 v{T+2}, 10, v{T}\nv_lshl_add_u32 v{T+2}, v{T+1}, 4, v{T+2}')
        e('s_lshl_b32 s45, s44, 15\ns_add_u32 s46, s45, 8192\ns_add_u32 s47, s45, 16384\ns_add_u32 s48, s45, 24576')
        for q in range(8):
            for i in range(4): e(f'buffer_load_dwordx4 {vr(A + 16 * q + 4 * i)}, v{T+2}, {SX}, s{45 + i} offen offset:{128 * q}')
        lstamp(3)
        lstamp(4)
        e(f's_lshl_b32 s49, {sW}, 13\ns_add_u32 s49, s49, {XST}')
        e(f'v_lshrrev_b32 v{T+3}, 4, v{vL}\nv_xor_b32 v{T+3}, v{T+3}, v{T+1}\nv_lshlrev_b32 v{T+4}, 7, v{T}\nv_add_u32 v{T+4}, s49, v{T+4}')
        e(f'v_lshl_add_u32 v{T+5}, v{T+3}, 4, v{T+4}\nv_xor_b32 v{T+3}, 4, v{T+3}\nv_lshl_add_u32 v{T+6}, v{T+3}, 4, v{T+4}')
        e(f'v_and_b32 v{T}, 31, v{vL}\nv_lshrrev_b32 v{T+1}, 5, v{vL}\nv_bfe_u32 v{T+3}, v{vL}, 1, 3\nv_xor_b32 v{T+1}, v{T+1}, v{T+3}')
        e(f'v_lshlrev_b32 v{T}, 7, v{T}\nv_add_u32 v{T}, s49, v{T}')
        for s in range(4): e(f'v_xor_b32 v{T+3}, {2 * s}, v{T+1}\nv_lshl_add_u32 v{T+7+s}, v{T+3}, 4, v{T}')
        for k in range(4): e(f'v_mov_b32 v{T+12+k}, 0')
        def dots(q):
            for r in range(16):
                e(f'v_dot2c_f32_bf16 v{T+12+(r&1)}, {ONES}, v{A + 16*q + r}\nv_dot2c_f32_bf16 v{T+14+(r&1)}, v{A + 16*q + r}, v{A + 16*q + r}')
        for q in range(8):
            for i in range(4): e(f'ds_write_b128 v{T+5+(i&1)}, {vr(A + 16*q + 4*i)} offset:{1024*i + 4096*(q&1)}')
            for s in range(4): e(f'ds_read_b128 {vr(A + 16*q + 4*s)}, v{T+7+s} offset:{4096*(q&1)}')
            if q == 0: lstamp(5)
            if q == 7: lstamp(6)
            if q: dots(q - 1)
        dots(7)
        e(f's_nop 2\nv_add_f32 v{T+12}, v{T+12}, v{T+13}\nv_add_f32 v{T+14}, v{T+14}, v{T+15}\ns_nop 1\nv_permlane32_swap_b32 v{T+12}, v{T+14}')
        e(f'v_add_f32 v{T+12}, v{T+12}, v{T+14}\nv_mov_b32 v{T+14}, v{T+12}\ns_nop 1\nv_permlane32_swap_b32 v{T+12}, v{T+14}')
        run(stats_finish(T + 12, T + 14, vA_, EX, vL))
        lstamp(7)
        pre = []
    else:
        e(f'v_lshlrev_b32 v{vo2}, 2, v{vL}\nv_lshlrev_b32 v{vAo}, 4, v{vL}')
        e(f's_add_u32 s55, s71, {sAX2}\ns_lshl_b32 s45, {sW}, 12\ns_add_u32 s45, s45, s55\ns_add_u32 s45, s45, {A_ST}\ns_lshl_b32 s47, {sW}, 15\ns_add_u32 s55, s55, s47\ns_add_u32 s55, s55, {A_X}')
    tr_lane_parts(vL, BR)
    r_, c_, h_ = BR, BR + 1, BR + 2
    if first: e(f'v_lshl_add_u32 v{vB}, v{h_}, 3, v{r_}\nv_add_u32 v{vB+1}, 4, v{vB}')
    else: e(f'v_lshl_add_u32 v{vB}, v{h_}, 2, v{r_}\nv_add_u32 v{vB+1}, 8, v{vB}')
    for k in range(2): e(f'v_mul_u32_u24 v{vB+k}, 192, v{vB+k}\nv_add_u32 v{vB+k}, v{vB+k}, v{c_}\nv_add_u32 v{vB+2+k}, 49152, v{vB+k}')
    if not first:
        flag_wait_prep('x', T, T + 1); flag_wait(P_W2 - 5, T, T + 1)
        stamp('qkv_start', 0)
        stats_load('s45', T, vo2)
        al = ALoader(A, vo2 + 0, 's55', 32, vaddr=vAo)
        al.issue(AINIT)
        pre = stats_reduce(T, EW[0], EW[0] + 1) + stats_finish(EW[0], EW[0] + 1, vA_, EX, vL)
    barrier()
    if not first: dyn_barrier()
    stamp('qkv_bl', 0)
    nfr = [0]
    seq = [(ks, j) for ks in range(32) for j in (2, 0)] + [(ks, 1) for ks in range(32)]
    regs = {}; AH = 6
    def issue(n):
        if n >= len(seq): return
        ks, j = seq[n]
        b = BR + 4 * (nfr[0] % 8); nfr[0] += 1; regs[n] = b
        a = vB + 2 * (ks // 16); o = (ks % 16) * 3072 + 64 * j
        e(f'ds_read_b64_tr_b16 v[{b}:{b+1}], v{a} offset:{o}\nds_read_b64_tr_b16 v[{b+2}:{b+3}], v{a+1} offset:{o}')
    for n in range(AH): issue(n)
    def mm(j, w, x, c):
        acc = ACC + 16 * j
        return f'v_mfma_f32_32x32x16_bf16 {vr(acc,16)}, {vr(w if j < 2 else x)}, {vr(x if j < 2 else w)}, {vr(acc,16) if c else 0}'
    slots = []
    for n, (ks, j) in enumerate(seq):
        def mf(n=n, ks=ks, j=j):
            e(mm(j, regs[n], A + 4 * ks, ks)); issue(n + AH)
            if not first and n & 1: al.issue(1)
        slots.append([mf])
    pre += [f'v_and_b32 v{T+15}, 31, v{vL}', f'v_lshlrev_b32 v{T+15}, 2, v{T+15}', f's_lshl_b32 s52, {sW}, 8', f's_add_u32 s52, s52, {VST}',
            f'v_add_u32 v{vo}, s52, v{T+15}', f'ds_write_b32 v{vo}, v{vA_}', f'v_add_u32 v{T+15}, {CSQ3 if first else CSQ}, v{T+15}']
    for j in range(3): pre += ext_w(EW[j], T + 15, 128 * j, first)
    pre += [f'v_lshrrev_b32 v{vo}, 5, v{vL}', f'v_lshl_add_u32 v{vo}, v{vo}, 4, s52']
    for q in range(4): pre.append(f'ds_read_b128 {vr(T + 4*q)}, v{vo} offset:{32*q}')
    pre += [f's_and_b32 s49, {sR0}, 15', 's_lshr_b32 s51, s49, 1', 's_and_b32 s49, s49, 1',
            f's_mul_i32 s45, {sW}, {HT}', f's_add_u32 s45, s45, {sAQ}', 's_add_u32 s45, s45, s71', 's_lshl_b32 s52, s51, 12', 's_add_u32 s45, s45, s52',
            f's_add_u32 s46, s45, {A_V}', 's_lshl_b32 s52, s49, 11', 's_add_u32 s46, s46, s52',
            's_lshl_b32 s52, s49, 15', 's_add_u32 s45, s45, s52', 's_lshl_b32 s52, s49, 17',
            's_lshl_b32 s53, s44, 10', f's_add_u32 s53, s53, {sK}', 's_lshl_b32 s54, s51, 18', 's_add_u32 s53, s53, s54',
            f's_add_u32 s54, s53, {2 * MB}', 's_add_u32 s54, s54, s52',
            f's_cmp_eq_u32 s49, 0\ns_cselect_b32 s47, {fl(0.25 * LOG2E)}, 1.0\ns_cselect_b32 s48, 0, 12',
            f'v_mul_f32 v{vA_}, s47, v{vA_}',
            f'v_lshrrev_b32 v{vo}, 1, v{vL}', f'v_xor_b32 v{vo}, v{vo}, v{vL}', f'v_bfe_i32 v{vo}, v{vo}, 2, 1', f'v_and_b32 v{vo}, s48, v{vo}',
            f'v_xor_b32 v{vo}, v{vo}, v{vL}', f'v_lshlrev_b32 v{vo}, 4, v{vo}']
    merge(slots[:64], pre, start=4 if first else 8, per=2)
    e(mm(2, EW[2], EX, 1)); e(mm(0, EW[0], EX, 1))
    fill = []
    if first:
        barrier()
        fill += bcast_issue(EW[0])
    lstamp(0)
    vg, vl = EW[2], EW[2] + 1
    fill += [f'v_and_b32 v{vg}, 15, v{vL}', f'v_lshlrev_b32 v{vg}, 4, v{vg}', f'v_lshrrev_b32 v{vl}, 5, v{vL}', f'v_lshl_add_u32 v{vg}, v{vl}, 8, v{vg}',
             f'v_bfe_u32 v{vL}, v{vL}, 4, 1', f'v_lshl_add_u32 v{vl}, v{vL}, 10, v{vg}', f'v_lshl_add_u32 v{vg}, v{vL}, 16, v{vg}']
    if first: fill += bcast_take(EW[0])
    acc = ACC + 32
    for half in (0, 8):
        fill += [f'v_mul_f32 v{acc + half + r}, v{T + half + r}, v{acc + half + r}' for r in range(8)] + cvt_half(acc + half)
    fill += [f'buffer_store_dwordx4 {vr(acc + half)}, v{vg}, {SWS}, s54 offen offset:{64 * half} sc1' for half in (0, 8)]
    fill.append(lambda acc=acc: store_act([f'buffer_store_dwordx4 {vr(acc + half)}, v{vl}, {SWS}, s46 offen offset:{64 * half}' for half in (0, 8)], sQS))
    def qk_epi(j):
        acc = ACC + 16 * j; o = []
        for half in (0, 8):
            o += [f'v_mul_f32 v{acc + half + r}, v{vA_}, v{acc + half + r}' for r in range(8)] + cvt_half(acc + half)
        o.append(lambda: store_act([f'buffer_store_dwordx4 {vr(acc)}, v{vo}, {SWS}, s45 offen offset:{2048 * j}',
                                    f'buffer_store_dwordx4 {vr(acc + 8)}, v{vo}, {SWS}, s45 offen offset:{2048 * j + 1024}'], sQS))
        return o
    def k_glob(j):
        for n in range(2): g.raw(f'buffer_store_dwordx4 {vr(ACC + 16 * j + 8 * n)}, v{vo}, {SWS}, s53 offen sc1'); e('s_add_u32 s53, s53, 65536')
    def k_glob0():
        X = g.lab('QK0')
        e(f's_cmp_eq_u32 s49, 0\ns_cbranch_scc1 {X}'); k_glob(0); e(f'{X}:')
    fill += qk_epi(0) + [k_glob0]
    merge(slots[64:], fill, start=0, per=3)
    e(mm(1, EW[1], EX, 1))
    barrier()
    lstamp(1)
    fs = flag_set(P_QKV, EW[0], EW[0] + 1)
    send_global_prep(EW[0] + 2, EW[0] + 3)
    run(qk_epi(1))
    WA = g.lab('QWA'); WD = g.lab('QWD')
    e(f's_cmp_eq_u32 s49, 0\ns_cbranch_scc1 {WA}')
    k_glob(1)
    e(f's_cmp_lg_u32 {sQS}, 0\ns_cbranch_scc1 {WA}')
    g.raw('s_waitcnt vmcnt(2)')
    e(f's_branch {WD}')
    e(f'{WA}:')
    g.raw('s_waitcnt vmcnt(0)')
    e(f'{WD}:')
    fs()
    lstamp(2)
    send_global(EW[0] + 2, EW[0] + 3, 1)
    e('s_setprio 0')
    lstamp_flush(['qkv_k', 'qkv_t2', 'qkv_loc'] + (['q0_iss', 'q0_b0', 'q0_x0', 'q0_x7', 'q0_cdone'] if first else []))

def dyn_barrier(work=None):
    X = g.lab('DYN')
    e(f's_cmp_eq_u32 {sDY}, 0\ns_cbranch_scc1 {X}')
    save = (list(g.vm), list(g.lg))
    if work: work()
    barrier()
    g.vm, g.lg = save
    e(f'{X}:')

def qkv_phase(first):
    LH = g.lab('QH'); LD = g.lab('QD'); LE = g.lab('QE'); LJ = g.lab('QJ')
    g.reset_track()
    e(f's_mov_b32 {sR0}, {sR}\ns_mov_b32 {sGQ}, {sG}\ns_add_u32 {sGEP}, {sLAY}, 1')
    e(f's_cmp_ge_u32 {sW}, 4\ns_cbranch_scc1 {LH}')
    qkv_compute(first)
    e(f's_branch {LE}')
    e(f'{LH}:'); g.reset_track()
    e(f's_cmp_ge_u32 {sW}, 5\ns_cbranch_scc1 {LD}')
    if first:
        register_start()
        if 'nocodepf' not in OPT:
            lane(9)
            e(f's_getpc_b64 s[54:55]\nCODEPF:\ns_and_b32 s54, s54, 0xffffff80\ns_lshr_b32 s50, s2, 3\ns_lshl_b32 s50, s50, 11\nv_lshl_add_u32 v9, v9, 7, s50\nv_min_u32 v9, L_END-CODEPF-128, v9')
            e('s_mov_b64 exec, 0xffff')
            g.raw('global_load_dword v60, v9, s[54:55]')
            e('s_mov_b64 exec, -1')
        stamp('q0_sdone', 1)
        barrier()
        register_resolve()
        barrier()
    else:
        barrier()
        dyn_barrier()
    e(f's_branch {LJ}')
    e(f'{LD}:'); g.reset_track()
    if first:
        qkv0_loader()
        if PROF:
            _sstore(_sidx('q0_d1', 1), 1, 's72'); _sstore(_sidx('q0_d10', 1), 1, 's74')
        barrier()
        e(f's_sub_u32 s50, {sW}, 5\ns_lshl_b32 s50, s50, 7')
        lane(9)
        e(f'v_and_b32 v9, 31, v9\nv_lshl_add_u32 v9, v9, 2, s50\nv_add_u32 v10, {CSQ3}, v9\nv_add_u32 v9, {CSQ}, v9')
        e('ds_read_b32 v11, v10\nds_read_b32 v12, v10 offset:384\nds_read_b32 v13, v10 offset:768\nv_add_f32 v11, v11, v12\nv_add_f32 v11, v11, v13\nds_write_b32 v9, v11')
        barrier()
        run(bcast_issue(2) + bcast_take(2))
    else:
        dma_qkvB(0, 10); dma_qkvB(21, 27); dma_qkvB(31, 32)
        e('s_waitcnt vmcnt(0)')
        barrier()
        dyn_barrier(colsum_qkv)
    e(f'{LJ}:')
    att_setup(True)
    barrier()
    e(f'{LE}:'); g.reset_track()

S = [0, 16]; O = 32; O2 = [32, 48]; NM = 48; Q2 = [64, 68]; KF = 72; VF = [76, 80]
vK, vV, vI, vD, vLa, vW1, vWO, vPA, vPD, DUM = 92, 93, 94, 95, 96, 97, 98, 99, 102, 100
vT, vA1, vA2, vRS, vFW = 84, 85, 86, 87, 88
LSUM = 139264
sKC, sWOd, sWOs, sW1d, sW1s, sPK = 's92', 's93', 's94', 's95', 's96', 's97'
def att_consts(split=True):
    vL = vLa
    if split: e(f's_lshr_b32 s51, {sW}, 2\ns_lshl_b32 s50, s51, 12\ns_add_u32 s50, s50, {KV0}\ns_mul_i32 s51, s51, {8 * VP}\ns_add_u32 s51, s51, {KV0 + 8192}')
    else: e(f's_mov_b32 s50, {KV0}\ns_mov_b32 s51, {KV0 + 8192}')
    e(f'v_add_u32 v{vK}, s50, v{vD}')
    e(f'v_and_b32 v4, 31, v{vL}\nv_lshrrev_b32 v5, 5, v{vL}\nv_lshlrev_b32 v5, 8, v5\nv_lshl_add_u32 v5, v4, 4, v5\nv_cmp_gt_u32 vcc, 16, v4')
    e(f'v_min_u32 v6, 17, v4\nv_lshl_add_u32 v6, v6, 4, 64\nv_add_u32 v6, 192, v6\nv_cndmask_b32 v{vV}, v6, v5, vcc\nv_add_u32 v{vV}, s51, v{vV}')
    for r in range(32): e(f'v_mov_b32 v{O + r}, 0')
def att_ptrs():
    e(f's_lshl_b32 {sWOd}, {sW}, 10\ns_lshl_b32 {sWOs}, {sW}, 13\ns_add_u32 {sWOs}, {sWOs}, s55')
    e(f's_add_u32 {sW1d}, {sWOd}, {W1R + 50 * 1024}\ns_add_u32 {sW1s}, {sW}, 50\ns_mul_i32 {sW1s}, {sW1s}, 28672\ns_add_u32 {sW1s}, {sW1s}, s54\ns_add_u32 {sW1s}, {sW1s}, 128')
def att_setup(helper):
    vL = vLa
    e(f's_mov_b32 {sRETRY}, 0')
    e(f's_mul_i32 s50, {sLAY}, 5\ns_mul_i32 s51, {sMODE}, {ASET}\ns_mul_i32 s50, s50, s51\ns_add_u32 s50, s50, {AB}')
    for r_ in (sAO, sAX1, sAH, sAX2): e(f's_add_u32 s50, s50, s51\ns_mov_b32 {r_}, s50')
    lane(vL)
    e(f'v_lshlrev_b32 v{vD}, 4, v{vL}\nv_mov_b32 v{vI}, 0xdddddddd')
    att_consts()
    e(f's_bfe_u32 s45, {sW}, 0x10001\ns_lshl_b32 s46, {sG}, 1\ns_add_u32 s45, s45, s46\ns_mul_i32 s45, s45, {ARENA}')
    e(f's_lshl_b32 s47, {sW}, 10\ns_add_u32 s67, s47, {KV0 + STG}\ns_mul_i32 s68, {sW}, {2 * VP}\ns_add_u32 s68, s68, {KV0 + STG + 8192}')
    e(f's_lshl_b32 s50, {sG}, 3\ns_lshr_b32 s51, {sR}, 2\ns_add_u32 s50, s50, s51\ns_lshl_b32 s50, s50, 9\ns_add_u32 s50, s50, {FL_GLB}\nv_lshl_add_u32 v{vPA}, v{vL}, 3, s50')
    addr_128(vW1, 3584); addr_128(vWO, 1024)
    e(f's_lshl_b32 s44, {sR}, 16\ns_add_u32 s44, s44, {sK}\ns_add_u32 s44, s44, s47')
    s_fb('s54'); e(f's_and_b32 s55, {sR}, 7\ns_lshl_b32 s55, s55, 7\ns_mov_b32 s71, 0\ns_lshl_b32 {sKC}, {sG}, 13')
    att_ptrs()
    if not helper:
        e(f's_mul_i32 {sPK}, {sW}, 28672\ns_add_u32 {sPK}, {sPK}, s54\ns_add_u32 {sPK}, {sPK}, 128')
        e(f's_lshr_b32 s50, {sR}, 3\ns_lshl_b32 s50, s50, 1\ns_lshl_b32 s51, {sG}, 3\ns_add_u32 s50, s50, s51\ns_and_b32 s51, {sW}, 1\ns_add_u32 s50, s50, s51\ns_lshl_b32 s50, s50, 15')
        e(f's_lshr_b32 s51, {sW}, 1\ns_lshl_b32 s51, s51, 6\ns_add_u32 s50, s50, s51\ns_add_u32 s50, s50, s55')
        e(f'v_and_b32 v4, 31, v{vL}\nv_lshrrev_b32 v5, 5, v{vL}\nv_lshlrev_b32 v4, 10, v4\nv_lshl_add_u32 v4, v5, 3, v4\nv_add_u32 v{vRS}, s50, v4')
        return
    e(f's_and_b32 s50, {sW}, 1\ns_mul_i32 s50, s50, 896\ns_bfe_u32 s51, {sW}, 0x10001\ns_lshl_b32 s51, s51, 3\ns_add_u32 s50, s50, s51\ns_add_u32 s50, s50, 368\ns_lshl_b32 s50, s50, 10\ns_add_u32 {sPK}, s50, s55')
    e(f's_and_b32 s52, {sW}, 3\nv_mov_b32 v{vRS}, 0x7f000000')
    def share_addr(v, share, shift, stride, cut, add, col):
        e(f's_lshr_b32 s50, {sR}, {shift}\ns_mul_i32 s50, s50, {share}\ns_mul_i32 s51, s52, {share // 4}\ns_add_u32 s50, s50, s51\nv_add_u32 v{v}, s50, v{vL}')
        e(f'v_cmp_gt_u32 vcc, {cut}, v{v}\nv_add_u32 v4, {add}, v{v}\ns_nop 0\nv_cndmask_b32 v{v}, v4, v{v}, vcc\nv_mul_u32_u24 v{v}, {stride}, v{v}\nv_add_u32 v{v}, {col}, v{v}')
        e(f'v_cmp_gt_u32 vcc, {share // 4}, v{vL}\nv_mov_b32 v4, 0x7f000000\ns_nop 0\nv_cndmask_b32 v{v}, v4, v{v}, vcc')
    share_addr(vA1, 88, 4, 3584, 0, 336, 's54'); share_addr(vA2, 184, 3, 1024, 368, 528, 's55')
    e(f's_lshr_b32 s50, {sR}, 4\ns_lshl_b32 s51, {sG}, 1\ns_add_u32 s50, s50, s51\ns_mul_i32 s50, s50, {ARENA}\ns_and_b32 s51, {sR}, 15\ns_mul_i32 s51, s51, {ALINES * 8 * 128}\ns_add_u32 s50, s50, s51')
    e(f's_mul_i32 s51, s52, {ALINES * 256}\ns_add_u32 s50, s50, s51\ns_add_u32 s50, s50, {AB}\ns_lshl_b32 s51, {sQT}, 30\ns_add_u32 s50, s50, s51\nv_lshl_add_u32 v{vT}, v{vL}, 8, s50')
    e(f'v_cmp_gt_u32 vcc, {ALINES}, v{vL}\nv_mov_b32 v4, 0x7f000000\ns_nop 0\nv_cndmask_b32 v{vT}, v4, v{vT}, vcc')
    e(f's_lshl_b32 s46, {sG}, 1\ns_mul_i32 s46, s46, {ARENA}\ns_mul_i32 s50, s52, {HT}\ns_add_u32 s46, s46, s50\ns_lshl_b32 s50, {sR}, 10\ns_add_u32 s46, s46, s50\ns_add_u32 s46, s46, {sAQ}')
    flag_wait_prep('att', vFW, 4)

def attention():
    vL = vLa
    DONE = g.lab('ADONE')
    def chunks():
        e(f's_cmp_lt_u32 {sW}, 6\ns_cselect_b32 s51, {ONES}, 0\ns_cselect_b32 s50, 0, 16')
        e('v_mov_b32 v0, s51\nv_mov_b32 v1, s51\nv_mov_b32 v2, s51\nv_mov_b32 v3, s51')
        e(f'v_lshrrev_b32 v4, 4, v{vL}\ns_and_b32 s51, {sW}, 1\ns_lshl_b32 s51, s51, 2\nv_add_u32 v4, s51, v4\nv_mul_u32_u24 v4, {STG}, v4')
        e(f'v_and_b32 v5, 15, v{vL}\nv_mul_u32_u24 v5, {VP}, v5\nv_add3_u32 v4, v4, v5, s50\nds_write_b128 v4, v[0:3] offset:{KV0 + 8192 + 512}')
    NG = g.lab('ANG'); NQ = g.lab('ANQ'); NC = g.lab('ANC'); NJ = g.lab('ANJ')
    gtest = f'v_min_u32 v{vPD}, v{vPD}, v{vPD+1}\nv_cmp_gt_u32 vcc, {sGEP}, v{vPD}'
    gload = f'global_load_dwordx2 v[{vPD}:{vPD+1}], v{vPA}, {WSP} sc1'
    e(f's_cmp_ge_u32 {sW}, 4\ns_cbranch_scc1 {NC}')
    att_setup(False)
    e(f's_branch {NJ}\n{NC}:')
    e(f's_cmp_eq_u32 {sQT}, 0\ns_cbranch_scc1 {NQ}')
    bounded_poll(gload, gtest)
    e(f's_branch {NG}\n{NQ}:')
    flag_wait(P_QKV, vFW, 4)
    e(f'{NG}:'); g.reset_track()
    stamp('att_start', 1)
    for hf in range(2):
        e(f's_and_b32 s52, {sW}, 3\ns_lshl_b32 s50, s52, 10\ns_add_u32 m0, s50, {4096 * hf}\ns_mul_i32 s52, s52, {2 * VP}')
        e(f'buffer_load_dwordx4 v{vD}, {SWS}, s46 offen sc1 lds')
        e(f's_add_u32 m0, s50, {KV0 + 4096 * hf}\ns_add_u32 s48, s46, {A_K}')
        e(f'buffer_load_dwordx4 v{vD}, {SWS}, s48 offen sc1 lds')
        e(f's_add_u32 m0, s52, {KV0 + 8192 + 8 * VP * hf}\ns_add_u32 s48, s46, {A_V}\ns_mov_b32 exec_hi, 0')
        e(f'buffer_load_dwordx4 v{vD}, {SWS}, s48 offen sc1 lds')
        e(f's_add_u32 m0, s52, {KV0 + 8192 + 8 * VP * hf + VP - 512}\ns_add_u32 s46, s46, {ARENA}')
        e(f'buffer_load_dwordx4 v{vD}, {SWS}, s48 offen offset:512 sc1 lds')
        e('s_mov_b32 exec_hi, -1')
    chunks()
    e(f'v_mov_b32 v4, {BCAST + 4}\nv_mov_b32 v5, 0\nds_write_b32 v4, v5')
    e('s_waitcnt vmcnt(0) lgkmcnt(0)')
    e(f'{NJ}:'); g.reset_track()
    barrier()
    e(f's_and_b32 s50, {sW}, 3\ns_lshl_b32 s50, s50, 11\nv_add_u32 v4, s50, v{vD}\nds_read_b128 {vr(Q2[0])}, v4\nds_read_b128 {vr(Q2[1])}, v4 offset:1024')
    tags = []
    def kv_issue(s, tag=True):
        if s > 7: return
        f = ' sc1' if s == 0 else KVNT
        if s: e(f's_add_u32 {sKC}, {sKC}, 8192\ns_and_b32 {sKC}, {sKC}, 0xffff\ns_mov_b32 m0, s67\ns_add_u32 s48, {sKC}, s44')
        else: e('s_mov_b32 m0, s67\ns_nop 0')
        e(f'buffer_load_dwordx4 v{vD}, {SWS}, s48 offen{f} lds')
        e(f's_mov_b32 m0, s68\ns_mov_b32 exec_hi, 0\ns_add_u32 s67, s67, {STG}')
        if s: e(f's_add_u32 s49, s48, {2 * MB}')
        e(f'buffer_load_dwordx4 v{vD}, {SWS}, s49 offen{f} lds')
        e(f's_add_u32 m0, s68, {VP - 512}\ns_add_u32 s68, s68, {STG}')
        e(f'buffer_load_dwordx4 v{vD}, {SWS}, s49 offen offset:512{f} lds')
        e('s_mov_b32 exec_hi, -1')
        if tag: tags.extend([s, s, s])
    base = {'K': 0, 'V': 0}
    def landed(s):
        n = len(tags) - 1 - max(i for i, x in enumerate(tags) if x == s)
        g.force_wait(f'vmcnt({n})'); barrier()
    def kread(kt):
        if kt > 31: return []
        return [f'ds_read_b128 {vr(KF)}, v{vK} offset:{(kt // 4) * STG + (kt % 4) * 1024 - base["K"]}']
    def vread(kt, half):
        if kt > 31: return []
        return [f'ds_read_b128 {vr(VF[half])}, v{vV} offset:{(kt // 4) * STG + (2 * (kt % 4) + half) * VP - base["V"]}']
    def qk(t): return f'v_mfma_f32_32x32x16_bf16 {vr(S[t & 1], 16)}, {vr(KF)}, {vr(Q2[t & 1])}, 0'
    def pv(t, half): return f'v_smfmac_f32_32x32x32_bf16 {vr(O2[t & 1], 16)}, {vr(VF[half])}, {vr(S[t & 1] + 8 * half, 8)}, v{vI}'
    def attempt(final):
        SK = g.lab('APS'); RT = g.lab('APR')
        e(f's_cmp_lg_u32 s71, 0\ns_cbranch_scc1 {SK}')
        if final: bounded_poll(gload, gtest)
        else:
            g.raw('s_waitcnt vmcnt(0)')
            for x in gtest.split('\n'): g.raw(x)
            g.raw('s_nop 0'); e(f's_cbranch_vccnz {RT}')
        kv_issue(1, False)
        e('s_mov_b32 s71, 1')
        if not final:
            e(f's_branch {SK}')
            e(f'{RT}:')
            g.raw(gload)
        e(f'{SK}:')
        g.vm = []
    def w1_pref(n, role=None):
        e(f's_mov_b32 m0, {sW1d}\ns_add_u32 {sW1d}, {sW1d}, 8192')
        if n == 58 and role != 'c': e(f's_cmp_ge_u32 {sW}, 6\ns_cselect_b32 s50, {64 * 28672 + 128}, 0\ns_sub_u32 {sW1s}, {sW1s}, s50')
        if n == 66: e(f's_cmp_lt_u32 {sW}, 6\ns_cselect_b32 s50, {64 * 28672 + 128}, 0\ns_sub_u32 {sW1s}, {sW1s}, s50')
        e(f'buffer_load_dwordx4 v{vW1}, {SW1}, {sW1s} offen lds\ns_add_u32 {sW1s}, {sW1s}, {8 * 28672}'); tags.append(-1)
    def wo_pref(k):
        e(f's_mov_b32 m0, {sWOd}\ns_add_u32 {sWOd}, {sWOd}, 8192')
        e(f'buffer_load_dwordx4 v{vWO}, {SWO}, {sWOs} offen lds\ns_add_u32 {sWOs}, {sWOs}, 65536'); tags.append(-1)
    def dummy(srd, v, f=''):
        g.raw(f'buffer_load_dword v{DUM}, v{v}, {srd}, 0 offen{f}'); tags.append(-1)
    def layer0(f):
        X = g.lab('AL0')
        e(f's_cmp_lg_u32 {sLAY}, 0\ns_cbranch_scc1 {X}'); f(); e(f'{X}:')
    def w2_part(m0_, m1_):
        for m in range(m0_, m1_):
            g.raw(f'buffer_load_dwordx4 {vr(WR + 4 * m)}, v{vWO}, {SW2}, {sPK} offen'); e(f's_add_u32 {sPK}, {sPK}, 16384')
    def r_part(m):
        g.raw(f'buffer_load_dwordx4 {vr(RQ[m])}, v{vW1}, {SW1}, {sPK} offen'); e(f's_add_u32 {sPK}, {sPK}, {4 * 28672}'); tags.append(-1)
    def res0():
        for q in range(4): g.raw(f'buffer_load_dwordx2 v[{RES + 2*q}:{RES + 2*q + 1}], v{vRS}, {SX}, 0 offen offset:{16 * q}')
    def loop(role):
        h = role == 'h'
        del tags[:]; base['K'] = base['V'] = 0
        jobs = {}
        def job(t, f): jobs.setdefault(t, []).append(f)
        for k in range(4): job(30 + 2 * k + h, lambda k=k: (wo_pref(2 * k), wo_pref(2 * k + 1)))
        for t, ns in ((38, (50,)), (46, (58, 66)), (54, (74, 82)), (58, (90, 98))): job(t + h, lambda ns=ns: [w1_pref(n, role) for n in ns])
        if h:
            for k, t in enumerate((15, 23, 41)): job(t, lambda k=k: layer0(lambda: w2_part(11 * k, 11 * k + 11)))
            for t in (10, 26, 42, 56): job(t, lambda: (dummy(SWS, vT, ' sc1'), dummy(SWS, vT, ' offset:128 sc1')))
            job(40, lambda: dummy(SW1, vA1)); job(48, lambda: dummy(SW2, vA2))
        else:
            for k in range(13): job(40 + k // 3 * 2 + (k >= 6), lambda k=k: r_part(k))
            job(53, lambda: layer0(res0))
        run(kread(0) + vread(0, 0) + vread(0, 1))
        g.vm = []
        g.raw(gload)
        e(qk(0))
        e('s_nop 11')
        for t in range(64):
            s0 = S[t & 1]; kt = t >> 1
            ex = [f'v_exp_f32 v{s0 + r}, v{s0 + r}' for r in range(16)]
            e(ex[0]); e(ex[1])
            if t: e(pv(t - 1, 1))
            if t & 1 == 0 and t: run(vread(kt, 1))
            if 1 <= t <= 6:
                attempt(t == 6)
                if t == 6:
                    tags.extend([1, 1, 1]); kv_issue(2)
            if t == 7:
                landed(1); lstamp(1)
                run(kread(4))
            if t % 8 == 6 and t > 8 or t == 58:
                s = t // 8 + 1
                if t < 58: landed(s)
                elif t == 58: barrier()
                if 'lean' not in OPT and t < 62: lstamp(s)
            if t % 8 == h and 8 <= t < 48: kv_issue(t // 8 + 2)
            if t & 1: g.wait_for(vr(KF))
            else: g.wait_for(vr(VF[0]))
            run(ex[2:5])
            if t < 63: e(qk(t + 1))
            if t & 1 == 0:
                if t % 8 == 6 and (t // 8) in (2, 5):
                    e(f'v_add_u32 v{vK}, {3 * STG}, v{vK}'); base['K'] += 3 * STG
                if t != 6: run(kread(kt + 1))
            run(jobs.get(t, []))
            run(ex[5:10])
            e(pv(t, 0))
            if t & 1:
                if t % 8 == 7 and (t // 8) in (2, 5):
                    e(f'v_add_u32 v{vV}, {3 * STG}, v{vV}'); base['V'] += 3 * STG
                run(vread(kt + 1, 0))
            else: g.wait_for(vr(VF[1]))
            run(ex[10:16])
        e('s_nop 1')
        e(pv(63, 1))
        snd = O2[0] if h else O2[1]
        e(f's_lshl_b32 s50, {sW}, 11\ns_add_u32 s50, s50, {RED}\nv_add_u32 v0, s50, v{vD}\ns_xor_b32 s50, s50, 8192\nv_add_u32 v1, s50, v{vD}')
        e(f's_lshl_b32 s50, {sW}, 8\ns_add_u32 s50, s50, {LSUM}\nv_lshl_add_u32 v2, v{vL}, 2, s50\ns_xor_b32 s50, s50, 1024\nv_lshl_add_u32 v3, v{vL}, 2, s50')
        e('s_nop 1')
        e(f'ds_write_b128 v0, {vr(snd)}\nds_write_b128 v0, {vr(snd + 4)} offset:1024\nds_write_b32 v2, v{snd + 8}')
        if h:
            for r in range(9): e(f'v_mov_b32 v{O + r}, v{O2[1] + r}')
            for r in range(4): e(f'v_mov_b32 v{Q2[0] + r}, v{Q2[1] + r}')
        e('s_waitcnt lgkmcnt(0)')
    LH = g.lab('ALH'); LJ = g.lab('ALJ')
    lstamp(0)
    save = (list(g.lg), g.smem_out)
    e(f's_cmp_ge_u32 {sW}, 4\ns_cbranch_scc1 {LH}')
    loop('c')
    e(f's_branch {LJ}\n{LH}:')
    g.lg, g.smem_out = save
    loop('h')
    e(f'{LJ}:')
    barrier()
    e(f'ds_read_b128 v[4:7], v1\nds_read_b128 v[8:11], v1 offset:1024\nds_read_b32 v12, v3')
    for r in range(9): e(f'v_add_f32 v{O + r}, v{O + r}, v{4 + r}')
    stamp('att_loop', 0)
    if 'fine' in OPT:
        X = g.lab('FIN')
        e(f's_and_b32 s50, {sW}, 3\ns_cmp_lg_u32 s50, {OPT.get("fw", 3)}\ns_cbranch_scc1 {X}\ns_cmp_ge_u32 {sW}, 4\ns_cbranch_scc1 {X}')
        lstamp_flush(['att_b0', 'att_b1', 'att_b2', 'att_drain', 'att_seen', 'att_b5', 'att_b6', 'att_b7', 'att_b8'])
        e(f'{X}:')
    else: lstamp_flush([f'att_b{i}' for i in range(9)])
    EPI = g.lab('AEPI')
    e(f'{EPI}:')
    e(f's_and_b32 s46, {sW}, 1\ns_lshl_b32 s46, s46, 1\ns_lshr_b32 s47, {sW}, 2\ns_add_u32 s46, s46, s47\ns_lshl_b32 s46, s46, 15\ns_lshl_b32 s47, {sR}, 10\ns_add_u32 s46, s46, s47\ns_add_u32 s46, s46, s45\ns_add_u32 s46, s46, {sAO}\ns_add_u32 s46, s46, {A_O}')
    e(f'v_mov_b32 v1, {fl(2.0**-30)}\nv_mov_b32 v2, {fl(2.0**64)}\nv_mov_b32 v3, 0x207')
    e(f'v_mov_b32 v{O + 9}, v{O + 8}\ns_nop 1\nv_permlane32_swap_b32 v{O + 8}, v{O + 9}\nv_rcp_f32 v0, v{O + 8}')
    e(f'v_cmp_nle_f32 s[50:51], v1, v{O + 8}\nv_cmp_nge_f32 vcc, v2, v{O + 8}\ns_nop 0\ns_or_b64 s[50:51], s[50:51], vcc')
    for r in range(8):
        e(f'v_cmp_class_f32 vcc, v{O + r}, v3\nv_mul_f32 v{O + r}, v0, v{O + r}\ns_or_b64 s[50:51], s[50:51], vcc')
    run(cvt_half(O))
    store_act([f'buffer_store_dwordx4 {vr(O)}, v{vD}, {SWS}, s46 offen'])
    NB = g.lab('ANB')
    if FORCE_SLOW: e('s_mov_b64 s[50:51], -1')
    e(f's_cmp_eq_u64 s[50:51], 0\ns_cbranch_scc1 {NB}')
    e(f'v_mov_b32 v4, {BCAST + 4}\nv_mov_b32 v5, 1\nds_write_b32 v4, v5')
    e(f'{NB}:')
    fs = flag_set(P_ATT, 6, 7, True)
    e('s_waitcnt vmcnt(0) lgkmcnt(0)')
    barrier()
    e(f'v_mov_b32 v4, {BCAST + 4}\nds_read_b32 v5, v4\ns_waitcnt lgkmcnt(0)\nv_readfirstlane_b32 s50, v5\ns_nop 0')
    e(f's_andn2_b32 s50, s50, {sRETRY}\ns_cmp_eq_u32 s50, 0\ns_cbranch_scc1 {DONE}')
    e(f's_mov_b32 {sRETRY}, 1')
    X = g.lab('ACH')
    e(f's_cmp_lt_u32 {sW}, 4\ns_cbranch_scc1 {X}')
    chunks()
    e(f'{X}:')
    att_consts(False)
    e(f's_lshl_b32 s44, {sR}, 16\ns_add_u32 s44, s44, {sK}\ns_lshl_b32 s47, {sW}, 10\ns_add_u32 s48, s44, s47\ns_add_u32 s49, s48, {2 * MB}')
    e(f's_add_u32 s67, s47, {KV0}\ns_mul_i32 s68, {sW}, {2 * VP}\ns_add_u32 s68, s68, {KV0 + 8192}')
    for k in range(8):
        kv_issue(0, False); e('s_add_u32 s48, s48, 8192\ns_add_u32 s49, s49, 8192')
    e('s_waitcnt vmcnt(0) lgkmcnt(0)')
    barrier()
    e(f'v_mov_b32 v{NM}, 0xff800000')
    for ps in range(2):
        L = g.lab('AMX'); L2 = g.lab('AMY')
        e('s_mov_b32 s50, 0')
        e(f'v_mov_b32 v100, v{vK}\nv_mov_b32 v101, v{vV}')
        e(f'{L}:')
        e(f'ds_read_b128 {vr(KF)}, v100\nds_read_b128 {vr(VF[0])}, v101\nds_read_b128 {vr(VF[1])}, v101 offset:{VP}')
        e(f's_add_u32 s50, s50, 1\ns_and_b32 s51, s50, 7\ns_cmp_eq_u32 s51, 0\ns_cselect_b32 s51, {16 * VP}, 0\ns_cselect_b32 s52, 8192, 0')
        e(f'v_add3_u32 v100, v100, s51, 64\nv_add_u32 v100, 960, v100\nv_add_u32 v101, s52, v101\nv_add_u32 v101, {2 * VP}, v101\ns_waitcnt lgkmcnt(0)')
        e(f'v_mfma_f32_32x32x16_bf16 {vr(S[0], 16)}, {vr(KF)}, {vr(Q2[0])}, {vr(NM, 16) if ps else 0}\ns_nop 12')
        if ps == 0:
            for r in range(0, 16, 2): e(f'v_max3_f32 v{NM}, v{NM}, v{r}, v{r + 1}')
        else:
            for r in range(16): e(f'v_exp_f32 v{r}, v{r}')
            e('s_nop 1'); e(pv(0, 0)); e(pv(0, 1))
        e(f's_cmp_lt_u32 s50, 64\ns_cbranch_scc1 {L}')
        if ps == 0:
            e(f'v_mov_b32 v{NM+1}, v{NM}\ns_nop 1\nv_permlane32_swap_b32 v{NM}, v{NM+1}\nv_max_f32 v{NM}, v{NM}, v{NM+1}\nv_sub_f32 v{NM}, 0, v{NM}')
            for r in range(1, 16): e(f'v_mov_b32 v{NM + r}, v{NM}')
    barrier()
    att_ptrs()
    for k in range(8): wo_pref(k)
    for n in range(50, 106, 8): w1_pref(n)
    e('s_nop 7')
    e(f's_branch {EPI}')
    e(f'{DONE}:'); g.reset_track()
    fs()

def proj_compute(kind):
    A = 0; ACC = 128; BR = 176; vB = 208; vL = 214; T = 216
    wo = kind == 'wo'
    NS = 16 if wo else 56
    e('s_setprio 1')
    lane(vL)
    e(f's_lshr_b32 s44, {sR}, 3\ns_lshl_b32 s44, s44, 1\ns_lshl_b32 s45, {sG}, 3\ns_add_u32 s44, s44, s45\ns_and_b32 s45, {sW}, 1\ns_add_u32 s44, s44, s45')
    e(f's_lshr_b32 s45, {sW}, 1\ns_and_b32 s47, {sR}, 7\ns_lshl_b32 s47, s47, 1\ns_add_u32 s47, s47, s45')
    e(f'v_lshlrev_b32 v{T}, 4, v{vL}')
    e(f's_lshr_b32 s71, s44, 2\ns_mul_i32 s71, s71, {ARENA}\ns_and_b32 s53, s44, 3')
    if wo: e(f's_lshl_b32 s46, s53, 15\ns_lshl_b32 s48, s45, 14\ns_add_u32 s46, s46, s48\ns_add_u32 s46, s46, {sAO}\ns_add_u32 s46, s46, {A_O}')
    else: e(f's_mul_i32 s46, s53, {HT}\ns_mul_i32 s48, s45, {56 * 1024}\ns_add_u32 s46, s46, s48\ns_add_u32 s46, s46, {sAH}')
    e('s_add_u32 s46, s46, s71')
    for k in range(8): e(f'v_lshlrev_b32 v{ACC + 2*k}, 16, v{RES + k}\nv_and_b32 v{ACC + 2*k + 1}, 0xffff0000, v{RES + k}')
    tr_lane_parts(vL, T + 4)
    h_ = T + 6
    tr128(vB, T + 4, 's45')
    if wo: e(f's_lshl_b32 s48, s45, 15\nv_add_u32 v{vB}, s48, v{vB}\nv_add_u32 v{vB+1}, s48, v{vB+1}')
    else:
        e(f's_lshl_b32 s48, s45, 15\ns_add_u32 s49, s48, {W2Y}\nv_add_u32 v{vB+2}, s49, v{vB}\nv_add_u32 v{vB+3}, s49, v{vB+1}')
        e(f's_add_u32 s49, s48, {W2Z}\nv_add_u32 v{vB+4}, s49, v{vB}\nv_add_u32 v{vB+5}, s49, v{vB+1}')
        e(f's_mul_i32 s48, s45, 14336\nv_add_u32 v{vB}, s48, v{vB}\nv_add_u32 v{vB+1}, s48, v{vB+1}')
    e(f's_lshl_b32 s48, {sW}, 12\ns_add_u32 s48, s48, {RED}\nv_add_u32 v{T+1}, s48, v{T}\ns_xor_b32 s48, s48, 8192\nv_add_u32 v{T+2}, s48, v{T}')
    flag_wait_prep(kind, T + 8, T + 9); flag_wait(P_ATT if wo else P_W1, T + 8, T + 9)
    stamp(kind + '_start', 0)
    al = ALoader(A, 0, 's46', NS, vaddr=T)
    al.issue(AINIT)
    nfr = [0]; regs = {}
    def where(ks):
        if wo or ks < 7: return 0, ks
        if ks < 23: return 2, ks - 7
        if ks < 39: return 4, ks - 23
        if ks < 46: return 0, ks - 39
        return 2, ks - 46
    def issue(n):
        ks, j = divmod(n, 2)
        if ks >= NS: return
        if not wo and j == 0 and ks in (17, 39):
            e('s_waitcnt lgkmcnt(0)'); barrier()
        b = BR + 4 * (nfr[0] % 8); nfr[0] += 1; regs[n] = b
        a, slot = where(ks)
        e(trrd(b, vB + a + j, slot * 2048, 1024))
    AH = 6
    for n in range(AH): issue(n)
    for n in range(2 * NS):
        ks, j = divmod(n, 2)
        acc = ACC + 16 * j
        li = 2 * NS - 2
        if n >= li: j = 1 - j; acc = ACC + 16 * j
        c = '0' if (ks == 0 and j == 1) else vr(acc, 16)
        e(f'v_mfma_f32_32x32x16_bf16 {vr(acc,16)}, {vr(regs[2 * ks + j])}, {vr(A + 4 * (ks % 32))}, {c}')
        issue(n + AH)
        if al.k < NS and n & 1:
            al.issue(1)
            if wo and al.k == NS: barrier()
    stamp(kind + '_loop', 0)
    e(f's_add_u32 s71, s71, {sAX1 if wo else sAX2}')
    e(f's_lshl_b32 s46, s53, 15\ns_lshl_b32 s48, s47, 11\ns_add_u32 s46, s46, s48\ns_add_u32 s46, s46, s71\ns_add_u32 s46, s46, {A_X}')
    e(f's_lshl_b32 s49, s53, 12\ns_lshl_b32 s48, s47, 8\ns_add_u32 s49, s49, s48\ns_add_u32 s49, s49, s71\ns_add_u32 s49, s49, {A_ST}')
    for q in range(4): e(f'ds_write_b128 v{T+1}, {vr(ACC + 16 + 4*q)} offset:{1024 * q}')
    for k in range(4): e(f'v_mov_b32 v{T+8+k}, 0')
    e(f'v_lshlrev_b32 v{T+1}, 2, v{vL}')
    e('s_waitcnt lgkmcnt(0)')
    barrier()
    for q in range(4): e(f'ds_read_b128 {vr(ACC + 16 + 4*q)}, v{T+2} offset:{1024 * q}')
    for q in range(4):
        for r in range(4 * q, 4 * q + 4): e(f'v_add_f32 v{ACC + r}, v{ACC + r}, v{ACC + 16 + r}')
        for k in range(2 * q, 2 * q + 2): e(f'v_cvt_pk_bf16_f32 v{RES + k}, v{ACC + 2*k}, v{ACC + 2*k + 1}')
    def act_out():
        store_act([f'buffer_store_dwordx4 {vr(RES)}, v{T}, {SWS}, s46 offen', f'buffer_store_dwordx4 {vr(RES + 4)}, v{T}, {SWS}, s46 offen offset:1024'])
        for k in range(8): e(f'v_dot2c_f32_bf16 v{T+8+(k&1)}, {ONES}, v{RES + k}\nv_dot2c_f32_bf16 v{T+10+(k&1)}, v{RES + k}, v{RES + k}')
        e(f's_nop 2\nv_add_f32 v{T+8}, v{T+8}, v{T+9}\nv_add_f32 v{T+10}, v{T+10}, v{T+11}\ns_nop 1')
        e(f'v_permlane32_swap_b32 v{T+8}, v{T+10}\nv_add_f32 v{T+8}, v{T+8}, v{T+10}')
        store_act([f'buffer_store_dword v{T+8}, v{T+1}, {SWS}, s49 offen'])
    if wo: act_out()
    else:
        F = g.lab('W2F'); D = g.lab('W2D')
        e(f's_cmp_lg_u32 {sLAY}, 0\ns_cbranch_scc1 {F}')
        act_out()
        e(f's_branch {D}')
        e(f'{F}:')
        e(f'v_and_b32 v{T+1}, 31, v{vL}\nv_lshlrev_b32 v{T+1}, 10, v{T+1}\nv_lshl_add_u32 v{T+1}, v{h_}, 4, v{T+1}')
        e('s_lshl_b32 s46, s44, 15\ns_lshl_b32 s48, s47, 6\ns_add_u32 s46, s46, s48')
        e(f'v_permlane32_swap_b32 v{RES}, v{RES+2}\nv_permlane32_swap_b32 v{RES+1}, v{RES+3}\nv_permlane32_swap_b32 v{RES+4}, v{RES+6}\nv_permlane32_swap_b32 v{RES+5}, v{RES+7}')
        e(f'buffer_store_dwordx4 {vr(RES)}, v{T+1}, {SOUT}, s46 offen\nbuffer_store_dwordx4 {vr(RES+4)}, v{T+1}, {SOUT}, s46 offen offset:32')
        e(f'{D}:')
    stamp(kind + '_st', 0)
    e('s_setprio 0')
    if wo:
        e(f's_lshl_b32 s48, {sW}, 10\ns_add_u32 s48, s48, {W1R}\nv_add_u32 v{T+3}, s48, v{T}')
        for m in range(8): e(f'ds_write_b128 v{T+3}, {vr(RQ[m])} offset:{4096 * m}')
    fs = flag_set(P_WO if wo else P_W2, T + 8, T + 9)
    e('s_waitcnt vmcnt(0)')
    fs()
    barrier()
    if wo:
        X = g.lab('WRX')
        for m in range(8, 12): e(f'ds_write_b128 v{T+3}, {vr(RQ[m])} offset:{4096 * m}')
        e(f's_cmp_ge_u32 {sW}, 2\ns_cbranch_scc1 {X}')
        e(f'ds_write_b128 v{T+3}, {vr(RQ[12])} offset:{4096 * 12}')
        e(f'{X}:')
        e('s_waitcnt lgkmcnt(0)')

def wo_phase():
    LH = g.lab('OH'); LD = g.lab('OD'); LE = g.lab('OE')
    e(f's_cmp_ge_u32 {sW}, 4\ns_cbranch_scc1 {LH}')
    proj_compute('wo')
    e(f's_branch {LE}')
    e(f'{LH}:'); g.reset_track()
    colsum_w1(0)
    e(f's_cmp_ge_u32 {sW}, 5\ns_cbranch_scc1 {LD}')
    barrier(); barrier(); barrier()
    e(f's_branch {LE}')
    e(f'{LD}:'); g.reset_track()
    barrier()
    dma_w1(106, 128)
    N2 = g.lab('ON')
    barrier()
    e('s_waitcnt vmcnt(0)')
    barrier()
    e(f'{LE}:'); g.reset_track()

def w2_phase():
    LH = g.lab('TH'); LD = g.lab('TD'); LE = g.lab('TE'); N = g.lab('TN'); J = g.lab('TJ')
    e(f's_cmp_ge_u32 {sW}, 4\ns_cbranch_scc1 {LH}')
    proj_compute('w2')
    e(f's_branch {LE}')
    e(f'{LH}:'); g.reset_track()
    barrier()
    w2_regs_put('S')
    barrier()
    e(f's_cmp_lg_u32 {sLAY}, 0\ns_cbranch_scc1 {N}\ns_cmp_eq_u32 {sW}, 4\ns_cbranch_scc1 {N}')
    addr_qkvB(sR); dma_qkvB(10, 21); dma_qkvB(27, 31)
    e(f'{N}:')
    barrier()
    barrier()
    e(f'{LE}:'); g.reset_track()

def w1_compute():
    A = 0; ACC = 128; BR = 192; vB = 216; vL = 224; vA_, vA2, vo = 225, 226, 227; T = 228; EX = 232; EW = [236, 240]
    IDLE = g.lab('W1I'); END = g.lab('W1E')
    barrier()
    lane(vL)
    e(f's_and_b32 s47, {sR}, 15\ns_cmp_ge_u32 s47, 14\ns_cbranch_scc1 {IDLE}')
    e('s_setprio 1')
    e(f's_lshr_b32 s44, {sR}, 4\ns_lshl_b32 s45, {sG}, 1\ns_add_u32 s44, s44, s45\ns_mul_i32 s44, s44, {ARENA}')
    e(f'v_lshlrev_b32 v244, 2, v{vL}\nv_lshlrev_b32 v{vo}, 4, v{vL}')
    e(f's_add_u32 s55, s44, {sAX1}\ns_lshl_b32 s45, {sW}, 12\ns_add_u32 s45, s45, s55\ns_add_u32 s45, s45, {A_ST}\ns_lshl_b32 s48, {sW}, 15\ns_add_u32 s55, s55, s48\ns_add_u32 s55, s55, {A_X}')
    tr_lane_parts(vL, T); tr128(vB, T, 0)
    for k in range(2):
        e(f'v_add_u32 v{vB+2+k}, {W1R}, v{vB+k}\nv_add_u32 v{vB+6+k}, {W1R + 32768}, v{vB+k}\nv_add_u32 v{vB+4+k}, {W1P + 32768}, v{vB+k}\nv_add_u32 v{vB+k}, {W1P}, v{vB+k}')
    e(f'v_and_b32 v245, 31, v{vL}\nv_lshlrev_b32 v245, 2, v245\nv_add_u32 v245, {CS1}, v245')
    flag_wait_prep('x', T, T + 1); flag_wait(P_WO, T, T + 1)
    stamp('w1_start', 0)
    ST = ACC + 32
    stats_load('s45', ST, 244)
    al = ALoader(A, 0, 's55', 32, vaddr=vo)
    al.issue(AINIT)
    pre = stats_reduce(ST, T, T + 1) + stats_finish(T, T + 1, vA_, EX, vL) + [f'v_mul_f32 v{vA2}, {fl(-LOG2E)}, v{vA_}', f'v_rcp_f32 v{vA_}, v{vA_}']
    e(f's_mul_i32 s46, {sW}, {HT}\ns_lshl_b32 s48, s47, 13\ns_add_u32 s46, s46, s48\ns_add_u32 s46, s46, s44\ns_add_u32 s46, s46, {sAH}\ns_add_u32 s48, s46, 4096')
    seq = [(ks, j) for ks in range(32) for j in range(2)] + [(ks, 2) for ks in range(32)] + [(ks, 3) for ks in range(32)]
    regs = {}; nfr = [0]; AH = 5
    def issue(n):
        if n >= len(seq): return
        if n == 64:
            e('s_waitcnt lgkmcnt(0)'); barrier()
            e(f'ds_read_b32 v{EW[0]+2}, v245\nds_read_b32 v{EW[1]+2}, v245 offset:128')
        ks, j = seq[n]
        b = BR + 4 * (nfr[0] % 6); nfr[0] += 1; regs[n] = b
        e(trrd(b, vB + j + 4 * (ks // 16), (ks % 16) * 2048, 1024))
    for n in range(AH): issue(n)
    def mm(j, w, x, c):
        acc = ACC + 16 * j
        return f'v_mfma_f32_32x32x16_bf16 {vr(acc,16)}, {vr(w)}, {vr(x)}, {vr(acc,16) if c else 0}'
    slots = []
    for n, (ks, j) in enumerate(seq):
        def mf(n=n, ks=ks, j=j):
            e(mm(j, regs[n], A + 4 * ks, ks)); issue(n + AH)
            if al.k < 32 and n & 1:
                al.issue(1)
        slots.append([mf])
    def epi(j):
        acc = ACC + 16 * j; o = []
        for q in range(4):
            R = [acc + 4 * q + k for k in range(4)]
            for k in range(4): o.append(f'v_mul_f32 v{T + k}, v{vA2}, v{R[k]}')
            for k in range(4): o.append(f'v_exp_f32 v{T + k}, v{T + k}')
            for k in range(4): o.append(f'v_fma_f32 v{T + k}, v{T + k}, v{vA_}, v{vA_}')
            for k in range(4): o.append(f'v_rcp_f32 v{T + k}, v{T + k}')
            for k in range(4): o.append(f'v_mul_f32 v{R[k]}, v{R[k]}, v{T + k}')
            if q & 1: o += cvt_half(acc + 8 * (q >> 1))
        so = 's46' if j < 2 else 's48'
        o.append(lambda: store_act([f'buffer_store_dwordx4 {vr(acc)}, v{vo}, {SWS}, {so} offen offset:{2048 * (j & 1)}',
                                    f'buffer_store_dwordx4 {vr(acc + 8)}, v{vo}, {SWS}, {so} offen offset:{2048 * (j & 1) + 1024}']))
        return o
    merge(slots[:61], pre, start=8, per=2)
    merge(slots[61:64], ext_w(EW[0], 245, 0)[1:] + ext_w(EW[1], 245, 128)[1:], start=0, per=4)
    e('s_nop 0')
    e(mm(0, EW[0], EX, 1)); e(mm(1, EW[1], EX, 1))
    lstamp(0)
    f01 = ext_w(EW[0], 245, 256) + ext_w(EW[1], 245, 384) + epi(0) + epi(1); f2 = epi(2)
    cut = (len(f01) + len(f2)) // 2
    merge(slots[64:96], f01[:cut], start=0)
    e(mm(2, EW[0], EX, 1))
    lstamp(1)
    merge(slots[96:128], f01[cut:] + f2, start=0)
    e(mm(3, EW[1], EX, 1))
    barrier()
    stamp('w1_loop', 0)
    e('s_nop 10')
    run(epi(3))
    stamp('w1_st', 0)
    lstamp_flush(['w1_k', 'w1_t2'])
    e('s_setprio 0')
    fs = flag_set(P_W1, T, T + 1)
    e('s_waitcnt vmcnt(0)')
    fs()
    barrier()
    e(f's_branch {END}')
    e(f'{IDLE}:')
    for _ in range(3): barrier()
    e(f'{END}:')

def w1_phase():
    LH = g.lab('UH'); LD = g.lab('UD'); LE = g.lab('UE'); J = g.lab('UJ'); N = g.lab('UN')
    e(f's_cmp_ge_u32 {sW}, 4\ns_cbranch_scc1 {LH}')
    w1_compute()
    e(f's_branch {LE}')
    e(f'{LH}:'); g.reset_track()
    C = g.lab('UC')
    barrier()
    colsum_w1(1)
    barrier()
    e(f's_cmp_eq_u32 {sW}, 4\ns_cbranch_scc1 {J}')
    if 'nowarmq' not in OPT:
        e(f's_cmp_lg_u32 {sLAY}, 0\ns_cbranch_scc1 {C}')
        s_qkv_cols(sR); lane(9)
        e(f's_lshr_b32 s50, {sR}, 4\ns_cmp_eq_u32 s50, 0\ns_cselect_b32 s53, s53, s54\ns_sub_u32 s50, {sW}, 5\ns_mul_i32 s50, s50, 91\nv_add_u32 v10, s50, v9')
        for k in range(2):
            e(f'v_add_u32 v11, {64 * k}, v10\nv_cmp_le_u32 vcc, 160, v11\nv_add_u32 v12, 176, v11\ns_nop 0\nv_cndmask_b32 v11, v11, v12, vcc')
            e(f'v_cmp_le_u32 vcc, 432, v11\nv_add_u32 v12, 64, v11\ns_nop 0\nv_cndmask_b32 v11, v11, v12, vcc\nv_mul_u32_u24 v11, 3072, v11')
            if k: e('s_mov_b32 exec_hi, 0\ns_mov_b32 exec_lo, 0x7ffffff')
            g.raw(f'buffer_load_dword v60, v11, {SWQ}, s53 offen')
        e('s_mov_b64 exec, -1')
        e(f'{C}:')
    dma_w2('X')
    dma_w2('Y')
    e(f'{J}:')
    barrier()
    w2_regs_put('Z')
    e('s_waitcnt vmcnt(0)')
    barrier()
    e(f'{LE}:'); g.reset_track()

def main():
    K = NAME + '_kernel'
    e(f'{K}:')
    e('s_cmp_ge_u32 s2, 256\ns_cbranch_scc1 L_END')
    e('s_load_dwordx4 s[44:47], s[0:1], 0\ns_load_dwordx2 s[48:49], s[0:1], 16\ns_load_dwordx4 s[52:55], s[0:1], 32')
    e('s_load_dwordx2 s[56:57], s[0:1], 48\ns_load_dwordx2 s[32:33], s[0:1], 56\ns_load_dwordx2 s[34:35], s[0:1], 64')
    e(f'v_lshrrev_b32 v1, 6, v0\ns_and_b32 {sG}, s2, 7\ns_lshr_b32 {sR}, s2, 3\nv_readfirstlane_b32 {sW}, v1')
    e(f's_mov_b32 {sMODE}, 1\ns_mov_b32 {sQT}, 1\ns_mov_b32 {sQS}, 1\ns_mov_b32 {sLAY}, 0\ns_mov_b32 {sEP}, 0\ns_mov_b32 {sGEP}, 0')
    e(f's_mov_b32 {sK}, {KB[0]}\ns_mov_b32 {sAQ}, {AB}')
    e('s_waitcnt lgkmcnt(0)')
    for base, src, size in ((4, 44, 2 * MB), (8, 46, 512 * 3072), (12, 48, 512 * 1024), (16, 52, 512 * 3584), (20, 54, 1792 * 1024), (24, 56, 2 * MB), (28, 34, WS_SIZE)):
        e(f's_mov_b32 s{base}, s{src}\ns_mov_b32 s{base+1}, s{src+1}\ns_mov_b32 s{base+2}, {size}\ns_mov_b32 s{base+3}, 0x20000')
    stamp('begin', 0)
    if 'dbgt' in OPT: e('s_memrealtime s[98:99]\ns_memtime s[88:89]\ns_waitcnt lgkmcnt(0)')
    qkv_phase(True)
    e('L_LAYER:')
    attention()
    if STOP == 'att': e('s_endpgm')
    wo_phase()
    if STOP == 'wo': e('s_waitcnt vmcnt(0)\ns_endpgm')
    w1_phase()
    if STOP == 'w1': e('s_waitcnt vmcnt(0)\ns_endpgm')
    w2_phase()
    if 'dbgt' in OPT:
        e(f's_cmp_eq_u32 {sLAY}, 0\ns_cbranch_scc1 L_NDBG\ns_cmp_ge_u32 s2, 8\ns_cbranch_scc1 L_END')
        e('s_memrealtime s[58:59]\ns_memtime s[56:57]\ns_waitcnt lgkmcnt(0)\ns_sub_u32 s58, s58, s98\ns_sub_u32 s56, s56, s88\ns_lshl_b32 s57, s2, 3')
        e(f'v_mov_b32 v1, s57\nv_mov_b32 v2, s58\nv_mov_b32 v3, s56\nglobal_store_dwordx2 v1, v[2:3], {DBG}\nL_NDBG:')
    e(f's_cmp_lg_u32 {sLAY}, 0\ns_cbranch_scc1 L_END')
    if STOP == 'w2': e('s_waitcnt vmcnt(0)\ns_endpgm')
    e(f's_mov_b32 {sEP}, 5\ns_mov_b32 {sLAY}, 1\ns_andn2_b32 {sDY}, {sQT}, {sMODE}\ns_mov_b32 {sQT}, {sMODE}\ns_mov_b32 {sQS}, {sMODE}')
    e(f's_mov_b32 {sK}, {KB[1]}\ns_mul_i32 {sAQ}, {sMODE}, {5 * ASET}\ns_add_u32 {sAQ}, {sAQ}, {AB}')
    qkv_phase(False)
    e('s_branch L_LAYER')
    e('L_END:')
    e('s_endpgm')
    errs = check_hazards(g.ins) + [x for x in check_waits(g.ins) if not any(f"['v{r}'" in x for r in (60, 100, 102, 103)) and not x.endswith('s[16:19], s97 offen')]
    for x in errs: print(x, file=sys.stderr)
    head = f"""; fused 2-layer (MHA + SiLU FFN) block, one persistent launch: 256 workgroups x 8 waves, one per CU
; @launch grid=(256,1,1) block=(512,1,1) lds={LDS}
.amdgcn_target "amdgcn-amd-amdhsa--gfx950"
.text
.globl {K}
.p2align 8
.type {K},@function
"""
    tail = f""".section .rodata,"a"
.p2align 6
.amdhsa_kernel {K}
  .amdhsa_next_free_vgpr 256
  .amdhsa_next_free_sgpr 100
  .amdhsa_accum_offset 256
  .amdhsa_group_segment_fixed_size 0
  .amdhsa_kernarg_size 72
  .amdhsa_user_sgpr_count 2
  .amdhsa_user_sgpr_kernarg_segment_ptr 1
  .amdhsa_system_sgpr_workgroup_id_x 1
.end_amdhsa_kernel
"""
    out = [a for a in sys.argv[1:] if not a.startswith('--')]
    open(out[0] if out else 'out.s', 'w').write(head + g.text() + tail)
    if PROF:
        import json
        json.dump([[k[0], k[1], v] for k, v in stamp_idx.items()], open('stamps.json', 'w'))
    print('instructions:', sum(1 for i in g.ins if i.op), 'errors:', len(errs), file=sys.stderr)
main()
```

```python
import sys, math, struct
from asmlib import Gen, check_hazards, check_waits

NAME = 'interleave_layers__mha_block__dense_activation_silu__prompt'
OPT = {}
for a in sys.argv[1:]:
    if a.startswith('--'):
        k, _, v = a[2:].partition('='); OPT[k] = v or True
PROF = 'prof' in OPT
STOP = OPT.get('stop')
FORCE_SAFE = 'safe' in OPT
FORCE_DYN = 'dyn' in OPT
FORCE_SLOW = 'slowattn' in OPT
KVNT = ' nt' if 'kvnt' in OPT else ''

MB = 1 << 20
FL_LOC = 0; FL_GLB = 8192; PROFB = 65536
KB = [2 * MB, 6 * MB]
ARENA = 720 * 1024; ASET = 16 * ARENA; ALINES = ARENA // (128 * 128); AB = 10 * MB
A_Q, A_K, A_V, A_O, A_X, A_ST, A_H = 0, 32768, 65536, 458752, 589824, 720896, 0
HT = 112 * 1024
WS_SIZE = AB + 12 * ASET
LDS = 163840
SMALL = 161792
CSQ = SMALL; CS1 = SMALL + 512
BCAST = SMALL + 1536
VST = 160768
XST = 98304
CSQ3 = 147456
ITEM = 131072
VP = 544; STG = 8192 + 16 * VP; KV0 = SMALL - 8 * STG
W1R = 30720; W1P = W1R + 65536
RED = 65536
W2X, W2Y, W2Z = 0, W1P, W1R
RQ = [104, 108, 112, 116, 120, 124, 160, 164, 168, 172, 232, 236, 240]
WR = 104
SX, SWQ, SWO, SW1, SW2, SOUT, SWS = 's[4:7]', 's[8:11]', 's[12:15]', 's[16:19]', 's[20:23]', 's[24:27]', 's[28:31]'
DBG = 's[32:33]'; WSP = 's[34:35]'
sW, sG, sR, sMODE, sLAY, sEP, sGEP = 's36', 's37', 's38', 's39', 's40', 's41', 's42'
sRETRY = 's43'
sK, sAQ, sAO, sAX1, sAH, sAX2 = 's60', 's61', 's62', 's63', 's64', 's69'
sDY = 's90'; sQS = 's91'
sGQ = 's70'
sR0 = 's65'; sQT = 's66'
RES = 248
ONES = '0x3f803f80'
LOG2E = 1.4426950408889634

g = Gen()
e = g.e
def vr(a, n=4): return f'v[{a}:{a+n-1}]'
def fl(x): return hex(struct.unpack('<I', struct.pack('<f', x))[0])
def run(lst):
    for x in lst:
        if callable(x): x()
        else: e(x)
def lane(v): e(f'v_mbcnt_lo_u32_b32 v{v}, -1, 0\nv_mbcnt_hi_u32_b32 v{v}, -1, v{v}')
def barrier(): e('s_barrier')

stamp_idx = {}
def _sidx(name, role):
    key = (name, role)
    if key not in stamp_idx: stamp_idx[key] = len([k for k in stamp_idx if k[1] == role])
    assert stamp_idx[key] < 64
    return stamp_idx[key]
def _sstore(idx, role, src):
    e(f's_lshl_b32 s57, s2, 10\ns_mul_i32 s56, {sLAY}, 256\ns_add_u32 s57, s57, s56\ns_add_u32 s57, s57, {PROFB + role * 512 + idx * 4}')
    e('s_waitcnt lgkmcnt(0)')
    e(f'v_mov_b32 v246, s57\nv_mov_b32 v247, {src}')
    e(f'global_store_dword v246, v247, {WSP}')
def stamp(name, role):
    if 'tt' in OPT and name in ('begin', 'w2_st'):
        e('s_memrealtime s[58:59]'); _sstore(0 if name == 'begin' else 1, role, 's58'); return
    if not PROF: return
    e('s_memrealtime s[58:59]'); _sstore(_sidx(name, role), role, 's58')
def lstamp(i):
    if PROF: e(f's_memrealtime s[{72 + 2*i}:{73 + 2*i}]')
def lstamp_flush(names):
    if not PROF: return
    for i, n in enumerate(names): _sstore(_sidx(n, 0), 0, f's{72 + 2*i}')

def merge(slots, fill, start=0, per=None):
    n = len(slots) - start
    k = 0
    for i, s in enumerate(slots):
        run(s)
        if i >= start:
            tgt = len(fill) if i == len(slots) - 1 else (min(len(fill), (i - start + 1) * per) if per else (len(fill) * (i - start + 1)) // n)
            run(fill[k:tgt]); k = max(k, tgt)

def bounded_poll(load, test):
    L = g.lab('POLL'); X = g.lab('POLLX')
    e('s_mov_b32 s50, 0x40000')
    e(f'{L}:')
    e(load)
    e('s_waitcnt vmcnt(0)')
    e(test)
    e(f's_sub_u32 s50, s50, 1\ns_cmp_eq_u32 s50, 0\ns_cbranch_scc1 {X}')
    e(f's_cbranch_vccnz {L}')
    e(f'{X}:')

def flag_set(ph, va, vb, owned=False):
    A = g.lab('ARS'); B = g.lab('ARD')
    if owned: e(f's_and_b32 s51, {sW}, 3\ns_lshl_b32 s51, s51, 1\ns_lshr_b32 s50, {sW}, 2\ns_add_u32 s51, s51, s50\ns_lshl_b32 s51, s51, 7')
    else: e(f's_lshl_b32 s51, {sW}, 7')
    e(f's_lshl_b32 s50, {sG}, 10\ns_add_u32 s50, s50, s51\ns_lshl_b32 s51, {sR}, 2\ns_add_u32 s50, s50, s51\ns_add_u32 s51, {sEP}, {ph}')
    e(f'v_mov_b32 v{va}, s50\nv_mov_b32 v{vb}, s51')
    return lambda: (e('s_mov_b64 exec, 1'), store_act([f'global_store_dword v{va}, v{vb}, {WSP}']), e('s_mov_b64 exec, -1'))

def flag_wait_prep(kind, va, vt):
    lane(va)
    e(f's_lshl_b32 s50, {sG}, 10')
    if kind == 'wo':
        e(f's_lshr_b32 s51, {sR}, 3\ns_lshl_b32 s51, s51, 1\ns_and_b32 s52, {sW}, 1\ns_add_u32 s51, s51, s52\ns_lshl_b32 s51, s51, 7\ns_add_u32 s50, s50, s51')
        e(f's_lshr_b32 s51, {sW}, 1\ns_lshl_b32 s51, s51, 6\ns_add_u32 s50, s50, s51\nv_and_b32 v{va}, 15, v{va}\nv_lshl_add_u32 v{va}, v{va}, 2, s50')
    elif kind == 'x':
        e(f's_and_b32 s51, {sW}, 1\ns_lshl_b32 s51, s51, 7\ns_add_u32 s50, s50, s51\ns_lshr_b32 s51, {sR}, 4\ns_lshl_b32 s51, s51, 1\ns_lshr_b32 s52, {sW}, 1\ns_add_u32 s51, s51, s52\ns_lshl_b32 s51, s51, 5\ns_add_u32 s50, s50, s51')
        e(f'v_bfe_u32 v{vt}, v{va}, 3, 1\nv_and_b32 v{va}, 7, v{va}\nv_lshl_add_u32 v{va}, v{va}, 2, s50\nv_lshl_add_u32 v{va}, v{vt}, 8, v{va}')
    elif kind == 'w2':
        e(f's_bfe_u32 s51, {sR}, 0x10003\ns_lshl_b32 s51, s51, 1\ns_and_b32 s52, {sW}, 1\ns_add_u32 s51, s51, s52\ns_lshl_b32 s51, s51, 7\ns_add_u32 s50, s50, s51')
        e(f's_and_b32 s51, {sR}, 16\ns_lshl_b32 s51, s51, 2\ns_add_u32 s50, s50, s51\ns_lshr_b32 s51, {sW}, 1\ns_mul_i32 s51, s51, 28\ns_add_u32 s50, s50, s51')
        e(f'v_and_b32 v{va}, 7, v{va}\nv_min_u32 v{va}, 6, v{va}\nv_lshl_add_u32 v{va}, v{va}, 2, s50')
    else:
        e(f's_and_b32 s51, {sW}, 3\ns_lshl_b32 s51, s51, 7\ns_add_u32 s50, s50, s51\ns_lshr_b32 s51, {sR}, 2\ns_lshl_b32 s51, s51, 3\ns_add_u32 s50, s50, s51')
        e(f'v_bfe_u32 v{vt}, v{va}, 1, 1\nv_and_b32 v{va}, 1, v{va}\nv_lshl_add_u32 v{va}, v{va}, 2, s50\nv_lshl_add_u32 v{va}, v{vt}, 6, v{va}')
def flag_wait(ph, va, vt):
    e(f's_add_u32 s51, {sEP}, {ph}')
    if 'poll1' in OPT:
        bounded_poll(f'global_load_dword v{vt}, v{va}, {WSP} sc1', f'v_cmp_gt_u32 vcc, s51, v{vt}'); return
    NP = int(OPT.get('np', 2))
    L = g.lab('POLL'); X = g.lab('POLLX')
    e('s_mov_b32 s50, 0x20000')
    for k in range(NP - 1): g.raw(f'global_load_dword v{vt + k}, v{va}, {WSP} sc1'); g.raw('s_nop 15')
    e(f'{L}:')
    for k in range(NP):
        g.raw(f'global_load_dword v{vt + (k + NP - 1) % NP}, v{va}, {WSP} sc1')
        g.raw(f's_waitcnt vmcnt({NP - 1})')
        g.raw(f'v_cmp_gt_u32 vcc, s51, v{vt + k}'); g.raw('s_nop 0')
        e(f's_cbranch_vccz {X}')
    e(f's_sub_u32 s50, s50, 1\ns_cmp_lg_u32 s50, 0\ns_cbranch_scc1 {L}')
    e(f'{X}:')
    g.vm = [{f'v{vt + k}' for k in range(NP)}] * (NP - 1)
P_QKV, P_ATT, P_WO, P_W1, P_W2 = 1, 2, 3, 4, 5

def send_global_prep(va, vb):
    lane(va)
    e(f's_and_b32 s50, {sR0}, 15\ns_lshr_b32 s50, s50, 1\ns_lshl_b32 s50, s50, 9\ns_lshl_b32 s51, {sGQ}, 6\ns_add_u32 s50, s50, s51')
    e(f's_lshr_b32 s51, {sR0}, 4\ns_lshl_b32 s51, s51, 5\ns_add_u32 s50, s50, s51\ns_and_b32 s51, {sR0}, 1\ns_lshl_b32 s51, s51, 4\ns_add_u32 s50, s50, s51')
    e(f's_lshl_b32 s51, {sW}, 2\ns_add_u32 s50, s50, s51\ns_add_u32 s50, s50, {FL_GLB}')
    e(f'v_lshl_add_u32 v{va}, v{va}, 12, s50\nv_mov_b32 v{vb}, {sGEP}')
def send_global(va, vb, n):
    g.raw(f's_waitcnt vmcnt({n})')
    e('s_mov_b64 exec, 0xff')
    g.raw(f'global_store_dword v{va}, v{vb}, {WSP} sc1')
    e('s_mov_b64 exec, -1')

def register_start():
    e('s_getreg_b32 s44, hwreg(HW_REG_XCC_ID)\ns_and_b32 s44, s44, 15')
    e(f's_lshl_b32 s50, s2, 5')
    e(f's_lshl_b32 s51, s2, 7\ns_add_u32 s51, s51, {FL_GLB}')
    lane(2)
    e('v_lshl_add_u32 v1, v2, 2, s50\nv_lshl_add_u32 v2, v2, 2, s51\nv_mov_b32 v3, 0')
    e('s_mov_b32 exec_hi, 0')
    e(f'global_store_dword v2, v3, {WSP} sc1')
    e('s_mov_b64 exec, 0xff')
    e(f'global_store_dword v1, v3, {WSP} offset:{FL_LOC} sc1')
    e('s_mov_b64 exec, 1')
    e('s_waitcnt vmcnt(0)')
    e('s_and_b32 s50, s2, 3\ns_lshl_b32 s50, s50, 3\ns_add_u32 s51, s44, 1\ns_lshl_b32 s51, s51, s50\ns_and_b32 s50, s2, 0xfc')
    e('v_mov_b32 v1, s50\nv_mov_b32 v2, s51')
    e(f'global_atomic_or v1, v2, {DBG} sc1')
    e('s_mov_b64 exec, -1')

def register_resolve():
    lane(3)
    e('v_lshlrev_b32 v5, 2, v3')
    test = ('v_and_b32 v6, 0xff, v4\nv_bfe_u32 v7, v4, 8, 8\nv_bfe_u32 v8, v4, 16, 8\nv_lshrrev_b32 v9, 24, v4\n'
            'v_min_u32 v10, v6, v7\nv_min3_u32 v10, v10, v8, v9\nv_cmp_eq_u32 vcc, 0, v10')
    bounded_poll(f'global_load_dword v4, v5, {DBG} sc1', test)
    e(f's_mov_b32 {sMODE}, {1 if FORCE_SAFE else 0}')
    for x in range(8):
        e('s_mov_b32 s52, 0')
        for b in range(4):
            e(f'v_cmp_eq_u32 vcc, {x + 1}, v{6 + b}\ns_nop 0\ns_bcnt1_i32_b64 s51, vcc\ns_add_u32 s52, s52, s51')
        e(f's_cmp_lg_u32 s52, 32\ns_cselect_b32 s51, 1, 0\ns_or_b32 {sMODE}, {sMODE}, s51')
    e('s_add_u32 s53, s44, 1\ns_mov_b32 s52, 0')
    for b in range(4):
        e(f'v_add_u32 v10, {b}, v5\nv_cmp_gt_u32 s[54:55], s2, v10\nv_cmp_eq_u32 vcc, s53, v{6 + b}\ns_nop 0\ns_and_b64 vcc, vcc, s[54:55]\ns_bcnt1_i32_b64 s51, vcc\ns_add_u32 s52, s52, s51')
    e('v_readlane_b32 s54, v4, 0\nv_readlane_b32 s55, v4, 1\nv_and_b32 v10, 1, v3\nv_cmp_eq_u32 vcc, 0, v10\nv_mov_b32 v11, s54\nv_mov_b32 v12, s55\nv_cndmask_b32 v11, v12, v11, vcc')
    e(f'v_cmp_ne_u32 vcc, v11, v4\ns_nop 0\ns_cmp_lg_u64 vcc, 0\ns_cselect_b32 {sQT}, 1, {1 if FORCE_DYN else 0}')
    e(f's_andn2_b32 s51, {sQT}, {sMODE}\ns_or_b32 {sQT}, {sQT}, {sMODE}')
    e(f's_cmp_lg_u32 s51, 0\ns_cselect_b32 {sG}, s44, {sG}\ns_cselect_b32 {sR}, s52, {sR}')
    e(f's_lshl_b32 s50, {sR}, 8\ns_lshl_b32 s51, {sMODE}, 16\ns_or_b32 s50, s50, s51\ns_lshl_b32 s51, {sQT}, 17\ns_or_b32 s50, s50, s51\ns_or_b32 s50, s50, {sG}')
    e(f'v_mov_b32 v1, {BCAST}\nv_mov_b32 v2, s50\nds_write_b32 v1, v2\ns_waitcnt lgkmcnt(0)')

def bcast_issue(v): return [f'v_mov_b32 v{v}, {BCAST}', f'ds_read_b32 v{v}, v{v}']
def bcast_take(v):
    return [f'v_readfirstlane_b32 s50, v{v}', 's_nop 0', f's_and_b32 {sG}, s50, 7', f's_bfe_u32 {sR}, s50, 0x50008', f's_bfe_u32 {sMODE}, s50, 0x10010', f's_bfe_u32 {sQT}, s50, 0x10011']

def store_act(lines, flag=sMODE):
    A = g.lab('STS'); B = g.lab('STD')
    for l in lines:
        if l.startswith(('buffer', 'global')): g.wait_for(*[t.strip() for t in l.split(None, 1)[1].split(',')[:2]])
    e(f's_cmp_lg_u32 {flag}, 0\ns_cbranch_scc1 {A}')
    save = list(g.vm)
    for l in lines: e(l)
    e(f's_branch {B}')
    e(f'{A}:')
    g.vm = save
    for l in lines: e(l + (' sc1' if l.startswith(('buffer', 'global')) else ''))
    e(f'{B}:')

def dma_loop(n, first, stride, body, cnt='s52'):
    L = g.lab('DL'); X = g.lab('DX')
    e(f's_mov_b32 {cnt}, {first}')
    e(f's_cmp_ge_u32 {cnt}, {n}\ns_cbranch_scc1 {X}')
    e(f'{L}:')
    body()
    e(f's_add_u32 {cnt}, {cnt}, {stride}\ns_cmp_lt_u32 {cnt}, {n}\ns_cbranch_scc1 {L}')
    e(f'{X}:')

def s_qkv_cols(r):
    e(f's_and_b32 s50, {r}, 15\ns_lshr_b32 s51, s50, 1\ns_and_b32 s50, s50, 1')
    e('s_lshl_b32 s53, s50, 10\ns_lshl_b32 s54, s51, 7\ns_add_u32 s53, s53, s54')
    e('s_lshl_b32 s55, s50, 6\ns_add_u32 s54, s54, s55\ns_add_u32 s54, s54, 2048')

def addr_qkvB(r):
    lane(9)
    s_qkv_cols(r)
    e('s_sub_u32 s54, s54, 128')
    for i in range(3):
        e(f'v_add_u32 v13, {64 * i}, v9\nv_mul_u32_u24 v14, 171, v13\nv_lshrrev_b32 v14, 11, v14')
        e('v_mul_u32_u24 v15, 12, v14\nv_sub_u32 v15, v13, v15')
        e('v_mov_b32 v16, s53\nv_mov_b32 v17, s54\nv_cmp_gt_u32 vcc, 8, v15\ns_nop 1\nv_cndmask_b32 v16, v17, v16, vcc')
        e(f'v_lshl_add_u32 v16, v15, 4, v16\nv_mul_u32_u24 v14, 3072, v14\nv_add_u32 v{10 + i}, v14, v16')
def qkvB_block(ks):
    e(f's_mul_i32 s53, {ks}, 3072\ns_mul_i32 s54, {ks}, 49152')
    for i in range(3):
        e(f's_add_u32 m0, s53, {1024 * i}\ns_nop 0')
        e(f'buffer_load_dwordx4 v{10 + i}, {SWQ}, s54 offen lds')
def dma_qkvB(lo, hi):
    e(f's_add_u32 s56, {sW}, {lo - 5}')
    dma_loop(hi, 's56', 3, lambda: qkvB_block('s52'))

def addr_128(v, stride):
    lane(v)
    e(f'v_lshrrev_b32 v13, 3, v{v}\nv_and_b32 v14, 7, v{v}\nv_lshlrev_b32 v15, 1, v13\nv_and_b32 v15, 4, v15\nv_xor_b32 v14, v14, v15')
    e(f'v_mul_u32_u24 v13, {stride}, v13\nv_lshl_add_u32 v{v}, v14, 4, v13')

def s_fb(dst):
    e(f's_and_b32 {dst}, {sR}, 15\ns_min_u32 {dst}, {dst}, 13\ns_lshl_b32 {dst}, {dst}, 8')

def w1_instr(n, v, sfb):
    e(f's_lshl_b32 s53, {n}, 10\ns_add_u32 m0, s53, {W1R}\ns_and_b32 s53, {n}, 63\ns_mul_i32 s53, s53, 28672\ns_add_u32 s53, s53, {sfb}')
    e(f's_cmp_lt_u32 {n}, 64\ns_cselect_b32 s51, 128, 0\ns_add_u32 s53, s53, s51')
    e(f'buffer_load_dwordx4 v{v}, {SW1}, s53 offen lds')
def dma_w1(lo, hi):
    addr_128(9, 3584); s_fb('s55')
    e(f's_add_u32 s56, {sW}, {lo - 5}')
    dma_loop(hi, 's56', 3, lambda: w1_instr('s52', 9, 's55'))

def dma_w2(region):
    addr_128(9, 1024)
    e(f's_and_b32 s55, {sR}, 7\ns_lshl_b32 s55, s55, 7\ns_sub_u32 s56, {sW}, 5')
    def bx():
        e(f's_lshl_b32 m0, s52, 10\ns_lshl_b32 s54, s52, 13\ns_add_u32 s54, s54, s55\ns_cmp_ge_u32 s52, 14\ns_cselect_b32 s51, {(896 - 112) * 1024}, 0\ns_add_u32 s54, s54, s51')
        e(f'buffer_load_dwordx4 v9, {SW2}, s54 offen lds')
    def by():
        e(f's_lshl_b32 s53, s52, 10\ns_add_u32 m0, s53, {W2Y}\ns_lshl_b32 s54, s52, 13\ns_add_u32 s54, s54, s55\ns_cmp_ge_u32 s52, 32\ns_cselect_b32 s51, {(896 - 256) * 1024}, 0\ns_add_u32 s54, s54, s51\ns_add_u32 s54, s54, {112 * 1024}')
        e(f'buffer_load_dwordx4 v9, {SW2}, s54 offen lds')
    if region == 'X': dma_loop(28, 's56', 3, bx)
    else: dma_loop(64, 's56', 3, by)

def w2_regs_load():
    addr_128(9, 1024)
    e(f's_and_b32 s50, {sW}, 1\ns_mul_i32 s50, s50, 896\ns_bfe_u32 s51, {sW}, 0x10001\ns_lshl_b32 s51, s51, 3\ns_add_u32 s50, s50, s51\ns_add_u32 s50, s50, 368\ns_lshl_b32 s50, s50, 10')
    e(f's_and_b32 s51, {sR}, 7\ns_lshl_b32 s51, s51, 7\ns_add_u32 s50, s50, s51')
    for m in range(33):
        e(f'buffer_load_dwordx4 {vr(WR + 4 * m)}, v9, {SW2}, s50 offen\ns_add_u32 s50, s50, 16384')
def w2_regs_put(part):
    lane(9)
    e(f's_and_b32 s50, {sW}, 1\ns_bfe_u32 s51, {sW}, 0x10001\ns_lshl_b32 s51, s51, 10\nv_lshl_add_u32 v9, v9, 4, s51')
    if part == 'Z':
        e(f's_lshl_b32 s50, s50, 15\ns_add_u32 s50, s50, {W2Z}\nv_add_u32 v10, s50, v9')
        for m in range(16): e(f'ds_write_b128 v10, {vr(WR + 4 * m)} offset:{2048 * m}')
    else:
        e(f's_mul_i32 s51, s50, 14336\nv_add_u32 v10, s51, v9\ns_lshl_b32 s50, s50, 15\ns_add_u32 s50, s50, {W2Y}\nv_add_u32 v11, s50, v9')
        for m in range(17):
            e(f'ds_write_b128 v{10 if m < 7 else 11}, {vr(WR + 64 + 4 * m)} offset:{2048 * (m if m < 7 else m - 7)}\ns_waitcnt lgkmcnt(0)')
    e('s_waitcnt lgkmcnt(0)')

def tr_lane_parts(vl, t0):
    e(f'v_bfe_u32 v{t0}, v{vl}, 2, 2\nv_bfe_u32 v{t0+1}, v{vl}, 4, 1\nv_lshlrev_b32 v{t0+1}, 5, v{t0+1}\nv_and_b32 v{t0+2}, 3, v{vl}')
    e(f'v_lshl_add_u32 v{t0+1}, v{t0+2}, 3, v{t0+1}\nv_lshrrev_b32 v{t0+2}, 5, v{vl}')
def tr128(dst, t0, ft):
    e(f'v_lshl_add_u32 v{dst}, v{t0+2}, 2, v{t0}\nv_lshlrev_b32 v{dst}, 7, v{dst}\nv_add_u32 v{dst}, v{dst}, v{t0+1}')
    e(f'v_lshrrev_b32 v{dst+1}, 1, v{t0}\nv_xor_b32 v{dst+1}, {ft}, v{dst+1}\nv_lshl_add_u32 v{dst}, v{dst+1}, 6, v{dst}\nv_xor_b32 v{dst+1}, 64, v{dst}')
def trrd(b, a, o, second): return f'ds_read_b64_tr_b16 v[{b}:{b+1}], v{a} offset:{o}\nds_read_b64_tr_b16 v[{b+2}:{b+3}], v{a} offset:{o + second}'

def qkv0_loader():
    SK = g.lab('QSK'); SK2 = g.lab('QSK')
    e('s_setprio 3')
    addr_qkvB(sR)
    e(f's_sub_u32 s52, {sW}, 6\ns_cmp_eq_u32 {sW}, 5\ns_cbranch_scc1 {SK}')
    qkvB_block('s52')
    e(f'{SK}:')
    LA = int(OPT.get('la', 8))
    for i in range(1, LA): e('s_add_u32 s52, s52, 3'); qkvB_block('s52')
    tr_lane_parts(9, 13)
    e(f'v_lshl_add_u32 v16, v15, 2, v13\nv_mul_u32_u24 v16, 192, v16\nv_add_u32 v16, v16, v14\ns_sub_u32 s50, {sW}, 3\ns_mul_i32 s50, s50, 3072')
    e(f's_max_u32 s51, {sW}, 6\ns_sub_u32 s51, s51, 6\ns_mul_i32 s51, s51, 3072\nv_add_u32 v36, s51, v16\nv_add_u32 v37, s50, v16\nv_add_u32 v38, {5 * 9216}, v37')
    for k in range(12): e(f'v_mov_b32 v{40 + k}, 0')
    for i in range(11):
        if i + LA < 11: e('s_add_u32 s52, s52, 3'); qkvB_block('s52')
        g.raw(f's_waitcnt vmcnt({3 * min(LA, 10 - i)})')
        if i == 1: lstamp(0)
        if i == 10: lstamp(1)
        if i == 0: e(f's_cmp_eq_u32 {sW}, 5\ns_cbranch_scc1 {SK2}')
        for j in range(3): e(trrd(24 + 4 * j, 36 + (i + 4) // 5, ((i - 1) % 5 if i else 0) * 9216 + 64 * j, 1536))
        for j in range(3):
            for k in range(4): e(f'v_dot2c_f32_bf16 v{40 + 4*j + k}, {ONES}, v{24 + 4*j + k}')
        if i == 0: e(f'{SK2}:')
    e('s_setprio 0')
    e(f's_mul_i32 s52, {sW}, 384\ns_add_u32 s52, s52, {CSQ3 - 5 * 384}\nv_and_b32 v9, 31, v9\nv_lshl_add_u32 v9, v9, 2, s52')
    for j in range(3): e(f'v_add_f32 v{40 + 4*j}, v{40 + 4*j}, v{41 + 4*j}\nv_add_f32 v{42 + 4*j}, v{42 + 4*j}, v{43 + 4*j}\nv_add_f32 v{40 + 4*j}, v{40 + 4*j}, v{42 + 4*j}')
    for j in range(3): e(f'v_mov_b32 v{41 + 4*j}, v{40 + 4*j}')
    e('s_nop 0')
    for j in range(3): e(f'v_permlane32_swap_b32 v{40 + 4*j}, v{41 + 4*j}\nv_add_f32 v{40 + 4*j}, v{40 + 4*j}, v{41 + 4*j}\nds_write_b32 v9, v{40 + 4*j} offset:{128 * j}')
    e('s_waitcnt lgkmcnt(0)')
    stamp('q0_ddone', 1)

def colsum_part(kss, a0, step, second):
    kss = list(kss)
    def rd(i): e(trrd(20 + 4 * (i % 5), a0 + kss[i] // 16, (kss[i] % 16) * step, second))
    for i in range(min(4, len(kss))): rd(i)
    for i in range(len(kss)):
        if i + 4 < len(kss): rd(i + 4)
        for j in range(4): e(f'v_dot2c_f32_bf16 v{44 + 4 * (i & 1) + j}, {ONES}, v{20 + 4 * (i % 5) + j}')
def colsum_end(tab):
    e('s_nop 2')
    for st in (4, 2, 1):
        for j in range(st): e(f'v_add_f32 v{44 + j}, v{44 + j}, v{44 + j + st}')
    lane(9)
    e('v_mov_b32 v45, v44\ns_nop 1\nv_permlane32_swap_b32 v44, v45\nv_add_f32 v44, v44, v45')
    e(f'v_and_b32 v9, 31, v9\ns_lshl_b32 s50, s50, 7\ns_add_u32 s50, s50, {tab}\nv_lshl_add_u32 v9, v9, 2, s50\nds_write_b32 v9, v44\ns_waitcnt lgkmcnt(0)')
def colsum_qkv():
    lane(9); tr_lane_parts(9, 13)
    e(f's_sub_u32 s50, {sW}, 5\ns_lshl_b32 s51, s50, 6')
    e('v_lshl_add_u32 v16, v15, 2, v13\nv_mul_u32_u24 v16, 192, v16\nv_add3_u32 v16, v16, v14, s51\nv_add_u32 v17, 49152, v16')
    for k in range(8): e(f'v_mov_b32 v{44 + k}, 0')
    colsum_part(range(32), 16, 3072, 8 * 192)
    colsum_end(CSQ)
def colsum_w1(window):
    X = g.lab('CW'); R = g.lab('CW'); J = g.lab('CW')
    e(f's_cmp_lg_u32 {sLAY}, 0\ns_cbranch_scc1 {X}')
    if window == 0:
        lane(9); tr_lane_parts(9, 13)
        e(f's_and_b32 s51, {sW}, 1')
        tr128(52, 13, 's51')
        e(f's_cmp_lt_u32 {sW}, 6\ns_cselect_b32 s51, 65536, 0\ns_add_u32 s51, s51, {W1R}\nv_add_u32 v52, s51, v52\nv_add_u32 v53, 32768, v52')
        for k in range(8): e(f'v_mov_b32 v{44 + k}, 0')
    e(f's_cmp_ge_u32 {sW}, 6\ns_cbranch_scc1 {R}')
    colsum_part(range(21) if window == 0 else range(21, 32), 52, 2048, 1024)
    e(f's_branch {J}\n{R}:')
    colsum_part(range(25, 32) if window == 0 else range(25), 52, 2048, 1024)
    e(f'{J}:')
    if window == 1:
        e(f's_sub_u32 s50, {sW}, 4'); colsum_end(CS1)
    e(f'{X}:')

def stats_finish(vS, vQ, vA, ext, vL):
    return [f'v_mul_f32 v{vS}, {fl(-1/512)}, v{vS}', f'v_mul_f32 v{vQ}, {fl(1/512)}, v{vQ}',
            f'v_fma_f32 v{vQ}, -v{vS}, v{vS}, v{vQ}', f'v_max_f32 v{vQ}, 0, v{vQ}', f'v_add_f32 v{vQ}, {fl(1e-5)}, v{vQ}',
            f'v_rsq_f32 v{vA}, v{vQ}', f'v_cmp_gt_u32 vcc, 32, v{vL}',
            f'v_cvt_pk_bf16_f32 v{ext}, v{vS}, v{vS}', f'v_lshlrev_b32 v{vQ}, 16, v{ext}', f'v_sub_f32 v{vS}, v{vS}, v{vQ}',
            f'v_cvt_pk_bf16_f32 v{ext+1}, v{vS}, 0', f'v_cndmask_b32 v{ext}, 0, v{ext}, vcc', f'v_cndmask_b32 v{ext+1}, 0, v{ext+1}, vcc',
            f'v_mov_b32 v{ext+2}, 0', f'v_mov_b32 v{ext+3}, 0']
def ext_w(ext, vaddr, off, three=False):
    o = [f'ds_read_b32 v{ext+2}, v{vaddr} offset:{off}']
    if three == 2: o += [f'ds_read_b32 v{ext}, v{vaddr} offset:{off + 256}', f'v_add_f32 v{ext+2}, v{ext+2}, v{ext}']
    elif three: o += [f'ds_read_b32 v{ext}, v{vaddr} offset:{off + 384}', f'ds_read_b32 v{ext+1}, v{vaddr} offset:{off + 768}', f'v_add_f32 v{ext+2}, v{ext+2}, v{ext}', f'v_add_f32 v{ext+2}, v{ext+2}, v{ext+1}']
    return o + [f'v_cvt_pk_bf16_f32 v{ext+1}, v{ext+2}, 0', f'v_lshlrev_b32 v{ext+3}, 16, v{ext+1}',
            f'v_sub_f32 v{ext+3}, v{ext+2}, v{ext+3}', f'v_cvt_pk_bf16_f32 v{ext}, v{ext+2}, v{ext+3}', f'v_mov_b32 v{ext+2}, 0', f'v_mov_b32 v{ext+3}, 0']
def stats_load(sbase, t0, vOff4):
    for ft in range(16): e(f'buffer_load_dword v{t0 + ft}, v{vOff4}, {SWS}, {sbase} offen offset:{ft * 256} sc1')
def stats_reduce(t0, vS, vQ):
    o = []
    for s in (8, 4, 2, 1):
        for k in range(s): o.append(f'v_add_f32 v{t0 + k}, v{t0 + k}, v{t0 + k + s}')
    o += [f'v_mov_b32 v{vS}, v{t0}', f'v_mov_b32 v{vQ}, v{t0}', 's_nop 1', f'v_permlane32_swap_b32 v{vS}, v{vQ}']
    return o
def cvt_half(acc):
    return [f'v_cvt_pk_bf16_f32 v{acc + k}, v{acc + 2 * k}, v{acc + 2 * k + 1}' for k in range(4)]

AINIT = int(OPT.get('ainit', 10))
class ALoader:
    def __init__(self, A, _, sreg, n, vaddr): self.A, self.s, self.n, self.v, self.k = A, sreg, n, vaddr, 0
    def issue(self, cnt, limit=None):
        for _ in range(cnt):
            ks = self.k
            if ks >= self.n or (limit is not None and ks >= limit): return
            self.k += 1
            e(f'buffer_load_dwordx4 {vr(self.A + 4 * (ks % 32))}, v{self.v}, {SWS}, {self.s} offen offset:{1024 * (ks & 3)} sc1')
            if (ks & 3) == 3: e(f's_add_u32 {self.s}, {self.s}, 4096')

def qkv_compute(first):
    A = 0; ACC = 128; BR = 176; vB = 208; vL = 212; vA_ = 213; vo = 214; vo2 = 215; T = 216; vAo = 159
    EX = 232; EW = [236, 240, 244]
    e('s_setprio 1')
    lane(vL)
    e(f's_lshr_b32 s44, {sR}, 4\ns_lshl_b32 s45, {sG}, 1\ns_add_u32 s44, s44, s45\ns_mul_i32 s71, s44, {ARENA}\ns_lshl_b32 s44, s44, 2\ns_add_u32 s44, s44, {sW}')
    if first:
        e(f'v_lshrrev_b32 v{T}, 3, v{vL}\nv_and_b32 v{T+1}, 7, v{vL}\nv_lshlrev_b32 v{T+2}, 10, v{T}\nv_lshl_add_u32 v{T+2}, v{T+1}, 4, v{T+2}')
        e('s_lshl_b32 s45, s44, 15\ns_add_u32 s46, s45, 8192\ns_add_u32 s47, s45, 16384\ns_add_u32 s48, s45, 24576')
        for q in range(8):
            for i in range(4): e(f'buffer_load_dwordx4 {vr(A + 16 * q + 4 * i)}, v{T+2}, {SX}, s{45 + i} offen offset:{128 * q}')
        lstamp(3)
        lstamp(4)
        e(f's_lshl_b32 s49, {sW}, 13\ns_add_u32 s49, s49, {XST}')
        e(f'v_lshrrev_b32 v{T+3}, 4, v{vL}\nv_xor_b32 v{T+3}, v{T+3}, v{T+1}\nv_lshlrev_b32 v{T+4}, 7, v{T}\nv_add_u32 v{T+4}, s49, v{T+4}')
        e(f'v_lshl_add_u32 v{T+5}, v{T+3}, 4, v{T+4}\nv_xor_b32 v{T+3}, 4, v{T+3}\nv_lshl_add_u32 v{T+6}, v{T+3}, 4, v{T+4}')
        e(f'v_and_b32 v{T}, 31, v{vL}\nv_lshrrev_b32 v{T+1}, 5, v{vL}\nv_bfe_u32 v{T+3}, v{vL}, 1, 3\nv_xor_b32 v{T+1}, v{T+1}, v{T+3}')
        e(f'v_lshlrev_b32 v{T}, 7, v{T}\nv_add_u32 v{T}, s49, v{T}')
        for s in range(4): e(f'v_xor_b32 v{T+3}, {2 * s}, v{T+1}\nv_lshl_add_u32 v{T+7+s}, v{T+3}, 4, v{T}')
        for k in range(4): e(f'v_mov_b32 v{T+12+k}, 0')
        def dots(q):
            for r in range(16):
                e(f'v_dot2c_f32_bf16 v{T+12+(r&1)}, {ONES}, v{A + 16*q + r}\nv_dot2c_f32_bf16 v{T+14+(r&1)}, v{A + 16*q + r}, v{A + 16*q + r}')
        for q in range(8):
            for i in range(4): e(f'ds_write_b128 v{T+5+(i&1)}, {vr(A + 16*q + 4*i)} offset:{1024*i + 4096*(q&1)}')
            for s in range(4): e(f'ds_read_b128 {vr(A + 16*q + 4*s)}, v{T+7+s} offset:{4096*(q&1)}')
            if q == 0: lstamp(5)
            if q == 7: lstamp(6)
            if q: dots(q - 1)
        dots(7)
        e(f's_nop 2\nv_add_f32 v{T+12}, v{T+12}, v{T+13}\nv_add_f32 v{T+14}, v{T+14}, v{T+15}\ns_nop 1\nv_permlane32_swap_b32 v{T+12}, v{T+14}')
        e(f'v_add_f32 v{T+12}, v{T+12}, v{T+14}\nv_mov_b32 v{T+14}, v{T+12}\ns_nop 1\nv_permlane32_swap_b32 v{T+12}, v{T+14}')
        run(stats_finish(T + 12, T + 14, vA_, EX, vL))
        lstamp(7)
        pre = []
    else:
        e(f'v_lshlrev_b32 v{vo2}, 2, v{vL}\nv_lshlrev_b32 v{vAo}, 4, v{vL}')
        e(f's_add_u32 s55, s71, {sAX2}\ns_lshl_b32 s45, {sW}, 12\ns_add_u32 s45, s45, s55\ns_add_u32 s45, s45, {A_ST}\ns_lshl_b32 s47, {sW}, 15\ns_add_u32 s55, s55, s47\ns_add_u32 s55, s55, {A_X}')
    tr_lane_parts(vL, BR)
    r_, c_, h_ = BR, BR + 1, BR + 2
    if first: e(f'v_lshl_add_u32 v{vB}, v{h_}, 3, v{r_}\nv_add_u32 v{vB+1}, 4, v{vB}')
    else: e(f'v_lshl_add_u32 v{vB}, v{h_}, 2, v{r_}\nv_add_u32 v{vB+1}, 8, v{vB}')
    for k in range(2): e(f'v_mul_u32_u24 v{vB+k}, 192, v{vB+k}\nv_add_u32 v{vB+k}, v{vB+k}, v{c_}\nv_add_u32 v{vB+2+k}, 49152, v{vB+k}')
    if not first:
        flag_wait_prep('x', EX, EX + 1); flag_wait(P_W2 - 5, EX, EX + 1)
        stamp('qkv_start', 0)
        stats_load('s45', T, vo2)
        al = ALoader(A, vo2 + 0, 's55', 32, vaddr=vAo)
        al.issue(AINIT)
        pre = stats_reduce(T, EW[0], EW[0] + 1) + stats_finish(EW[0], EW[0] + 1, vA_, EX, vL)
    barrier()
    if not first: dyn_barrier()
    stamp('qkv_bl', 0)
    nfr = [0]
    seq = [(ks, j) for ks in range(32) for j in (2, 0)] + [(ks, 1) for ks in range(32)]
    regs = {}; AH = 6
    def issue(n):
        if n >= len(seq): return
        ks, j = seq[n]
        b = BR + 4 * (nfr[0] % 8); nfr[0] += 1; regs[n] = b
        a = vB + 2 * (ks // 16); o = (ks % 16) * 3072 + 64 * j
        e(f'ds_read_b64_tr_b16 v[{b}:{b+1}], v{a} offset:{o}\nds_read_b64_tr_b16 v[{b+2}:{b+3}], v{a+1} offset:{o}')
    for n in range(AH): issue(n)
    def mm(j, w, x, c):
        acc = ACC + 16 * j
        return f'v_mfma_f32_32x32x16_bf16 {vr(acc,16)}, {vr(w if j < 2 else x)}, {vr(x if j < 2 else w)}, {vr(acc,16) if c else 0}'
    slots = []
    for n, (ks, j) in enumerate(seq):
        def mf(n=n, ks=ks, j=j):
            e(mm(j, regs[n], A + 4 * ks, ks)); issue(n + AH)
            if not first and n & 1: al.issue(1)
        slots.append([mf])
    pre += [f'v_and_b32 v{T+15}, 31, v{vL}', f'v_lshlrev_b32 v{T+15}, 2, v{T+15}', f's_lshl_b32 s52, {sW}, 8', f's_add_u32 s52, s52, {VST}',
            f'v_add_u32 v{vo}, s52, v{T+15}', f'ds_write_b32 v{vo}, v{vA_}', f'v_add_u32 v{T+15}, {CSQ3 if first else CSQ}, v{T+15}']
    for j in range(3): pre += ext_w(EW[j], T + 15, 128 * j, first)
    pre += [f'v_lshrrev_b32 v{vo}, 5, v{vL}', f'v_lshl_add_u32 v{vo}, v{vo}, 4, s52']
    for q in range(4): pre.append(f'ds_read_b128 {vr(T + 4*q)}, v{vo} offset:{32*q}')
    pre += [f's_and_b32 s49, {sR0}, 15', 's_lshr_b32 s51, s49, 1', 's_and_b32 s49, s49, 1',
            f's_mul_i32 s45, {sW}, {HT}', f's_add_u32 s45, s45, {sAQ}', 's_add_u32 s45, s45, s71', 's_lshl_b32 s52, s51, 12', 's_add_u32 s45, s45, s52',
            f's_add_u32 s46, s45, {A_V}', 's_lshl_b32 s52, s49, 11', 's_add_u32 s46, s46, s52',
            's_lshl_b32 s52, s49, 15', 's_add_u32 s45, s45, s52', 's_lshl_b32 s52, s49, 17',
            's_lshl_b32 s53, s44, 10', f's_add_u32 s53, s53, {sK}', 's_lshl_b32 s54, s51, 18', 's_add_u32 s53, s53, s54',
            f's_add_u32 s54, s53, {2 * MB}', 's_add_u32 s54, s54, s52',
            f's_cmp_eq_u32 s49, 0\ns_cselect_b32 s47, {fl(0.25 * LOG2E)}, 1.0\ns_cselect_b32 s48, 0, 12',
            f'v_mul_f32 v{vA_}, s47, v{vA_}',
            f'v_lshrrev_b32 v{vo}, 1, v{vL}', f'v_xor_b32 v{vo}, v{vo}, v{vL}', f'v_bfe_i32 v{vo}, v{vo}, 2, 1', f'v_and_b32 v{vo}, s48, v{vo}',
            f'v_xor_b32 v{vo}, v{vo}, v{vL}', f'v_lshlrev_b32 v{vo}, 4, v{vo}']
    merge(slots[:64], pre, start=4 if first else 8, per=2)
    e(mm(2, EW[2], EX, 1)); e(mm(0, EW[0], EX, 1))
    fill = []
    if first:
        barrier()
        fill += bcast_issue(EW[0])
    lstamp(0)
    vg, vl = EW[2], EW[2] + 1
    fill += [f'v_and_b32 v{vg}, 15, v{vL}', f'v_lshlrev_b32 v{vg}, 4, v{vg}', f'v_lshrrev_b32 v{vl}, 5, v{vL}', f'v_lshl_add_u32 v{vg}, v{vl}, 8, v{vg}',
             f'v_bfe_u32 v{vL}, v{vL}, 4, 1', f'v_lshl_add_u32 v{vl}, v{vL}, 10, v{vg}', f'v_lshl_add_u32 v{vg}, v{vL}, 16, v{vg}']
    if first: fill += bcast_take(EW[0])
    acc = ACC + 32
    for half in (0, 8):
        fill += [f'v_mul_f32 v{acc + half + r}, v{T + half + r}, v{acc + half + r}' for r in range(8)] + cvt_half(acc + half)
    fill += [f'buffer_store_dwordx4 {vr(acc + half)}, v{vg}, {SWS}, s54 offen offset:{64 * half} sc1' for half in (0, 8)]
    fill.append(lambda acc=acc: store_act([f'buffer_store_dwordx4 {vr(acc + half)}, v{vl}, {SWS}, s46 offen offset:{64 * half}' for half in (0, 8)], sQS))
    def qk_epi(j):
        acc = ACC + 16 * j; o = []
        for half in (0, 8):
            o += [f'v_mul_f32 v{acc + half + r}, v{vA_}, v{acc + half + r}' for r in range(8)] + cvt_half(acc + half)
        o.append(lambda: store_act([f'buffer_store_dwordx4 {vr(acc)}, v{vo}, {SWS}, s45 offen offset:{2048 * j}',
                                    f'buffer_store_dwordx4 {vr(acc + 8)}, v{vo}, {SWS}, s45 offen offset:{2048 * j + 1024}'], sQS))
        return o
    def k_glob(j):
        for n in range(2): g.raw(f'buffer_store_dwordx4 {vr(ACC + 16 * j + 8 * n)}, v{vo}, {SWS}, s53 offen sc1'); e('s_add_u32 s53, s53, 65536')
    def k_glob0():
        X = g.lab('QK0')
        e(f's_cmp_eq_u32 s49, 0\ns_cbranch_scc1 {X}'); k_glob(0); e(f'{X}:')
    fill += qk_epi(0) + [k_glob0]
    merge(slots[64:], fill, start=0, per=3)
    e(mm(1, EW[1], EX, 1))
    barrier()
    lstamp(1)
    fs = flag_set(P_QKV, EW[0], EW[0] + 1)
    send_global_prep(EW[0] + 2, EW[0] + 3)
    run(qk_epi(1))
    WA = g.lab('QWA'); WD = g.lab('QWD')
    e(f's_cmp_eq_u32 s49, 0\ns_cbranch_scc1 {WA}')
    k_glob(1)
    e(f's_cmp_lg_u32 {sQS}, 0\ns_cbranch_scc1 {WA}')
    g.raw('s_waitcnt vmcnt(2)')
    e(f's_branch {WD}')
    e(f'{WA}:')
    g.raw('s_waitcnt vmcnt(0)')
    e(f'{WD}:')
    fs()
    lstamp(2)
    send_global(EW[0] + 2, EW[0] + 3, 1)
    e('s_setprio 0')
    lstamp_flush(['qkv_k', 'qkv_t2', 'qkv_loc'] + (['q0_iss', 'q0_b0', 'q0_x0', 'q0_x7', 'q0_cdone'] if first else []))

def dyn_barrier(work=None):
    X = g.lab('DYN')
    e(f's_cmp_eq_u32 {sDY}, 0\ns_cbranch_scc1 {X}')
    save = (list(g.vm), list(g.lg))
    if work: work()
    barrier()
    g.vm, g.lg = save
    e(f'{X}:')

def qkv_phase(first):
    LH = g.lab('QH'); LD = g.lab('QD'); LE = g.lab('QE'); LJ = g.lab('QJ')
    g.reset_track()
    e(f's_mov_b32 {sR0}, {sR}\ns_mov_b32 {sGQ}, {sG}\ns_add_u32 {sGEP}, {sLAY}, 1')
    e(f's_cmp_ge_u32 {sW}, 4\ns_cbranch_scc1 {LH}')
    qkv_compute(first)
    e(f's_branch {LE}')
    e(f'{LH}:'); g.reset_track()
    e(f's_cmp_ge_u32 {sW}, 5\ns_cbranch_scc1 {LD}')
    if first:
        register_start()
        if 'nocodepf' not in OPT:
            lane(9)
            e(f's_getpc_b64 s[54:55]\nCODEPF:\ns_and_b32 s54, s54, 0xffffff80\ns_lshr_b32 s50, s2, 3\ns_lshl_b32 s50, s50, 11\nv_lshl_add_u32 v9, v9, 7, s50\nv_min_u32 v9, L_END-CODEPF-128, v9')
            e('s_mov_b64 exec, 0xffff')
            g.raw('global_load_dword v60, v9, s[54:55]')
            e('s_mov_b64 exec, -1')
        stamp('q0_sdone', 1)
        barrier()
        if 'mall' in OPT:
            lane(9)
            e('v_lshlrev_b32 v9, 7, v9\ns_mul_i32 s50, s2, 7168\ns_lshl_b32 s51, s2, 11\ns_mov_b32 exec_hi, 0xffffff')
            g.raw(f'buffer_load_dword v60, v9, {SW1}, s50 offen'); g.raw(f'buffer_load_dword v60, v9, {SW2}, s50 offen')
            e('s_mov_b64 exec, 0xffff')
            g.raw(f'buffer_load_dword v60, v9, {SWO}, s51 offen')
            e('s_mov_b64 exec, -1')
        register_resolve()
        barrier()
    else:
        barrier()
        dyn_barrier()
    e(f's_branch {LJ}')
    e(f'{LD}:'); g.reset_track()
    if first:
        qkv0_loader()
        if PROF:
            _sstore(_sidx('q0_d1', 1), 1, 's72'); _sstore(_sidx('q0_d10', 1), 1, 's74')
        barrier()
        e(f's_sub_u32 s50, {sW}, 5\ns_lshl_b32 s50, s50, 7')
        lane(9)
        e(f'v_and_b32 v9, 31, v9\nv_lshl_add_u32 v9, v9, 2, s50\nv_add_u32 v10, {CSQ3}, v9\nv_add_u32 v9, {CSQ}, v9')
        e('ds_read_b32 v11, v10\nds_read_b32 v12, v10 offset:384\nds_read_b32 v13, v10 offset:768\nv_add_f32 v11, v11, v12\nv_add_f32 v11, v11, v13\nds_write_b32 v9, v11')
        barrier()
        run(bcast_issue(2) + bcast_take(2))
    else:
        dma_qkvB(0, 10); dma_qkvB(21, 27); dma_qkvB(31, 32)
        e('s_waitcnt vmcnt(0)')
        barrier()
        dyn_barrier(colsum_qkv)
    e(f'{LJ}:')
    att_setup(True)
    barrier()
    e(f'{LE}:'); g.reset_track()

S = [0, 16]; O = 32; O2 = [32, 48]; NM = 48; Q2 = [64, 68]; KF = 72; VF = [76, 80]
vK, vV, vI, vD, vLa, vW1, vWO, vPA, vPD, DUM = 92, 93, 94, 95, 96, 97, 98, 99, 102, 100
vT, vA1, vA2, vRS, vFW = 84, 85, 86, 87, 88
LSUM = 139264
sKC, sWOd, sWOs, sW1d, sW1s, sPK = 's92', 's93', 's94', 's95', 's96', 's97'
def att_consts(split=True):
    vL = vLa
    if split: e(f's_lshr_b32 s51, {sW}, 2\ns_lshl_b32 s50, s51, 12\ns_add_u32 s50, s50, {KV0}\ns_mul_i32 s51, s51, {8 * VP}\ns_add_u32 s51, s51, {KV0 + 8192}')
    else: e(f's_mov_b32 s50, {KV0}\ns_mov_b32 s51, {KV0 + 8192}')
    e(f'v_add_u32 v{vK}, s50, v{vD}')
    e(f'v_and_b32 v4, 31, v{vL}\nv_lshrrev_b32 v5, 5, v{vL}\nv_lshlrev_b32 v5, 8, v5\nv_lshl_add_u32 v5, v4, 4, v5\nv_cmp_gt_u32 vcc, 16, v4')
    e(f'v_min_u32 v6, 17, v4\nv_lshl_add_u32 v6, v6, 4, 64\nv_add_u32 v6, 192, v6\nv_cndmask_b32 v{vV}, v6, v5, vcc\nv_add_u32 v{vV}, s51, v{vV}')
    for r in range(32): e(f'v_mov_b32 v{O + r}, 0')
def att_ptrs():
    e(f's_lshl_b32 {sWOd}, {sW}, 10\ns_lshl_b32 {sWOs}, {sW}, 13\ns_add_u32 {sWOs}, {sWOs}, s55')
    e(f's_add_u32 {sW1d}, {sWOd}, {W1R + 50 * 1024}\ns_add_u32 {sW1s}, {sW}, 50\ns_mul_i32 {sW1s}, {sW1s}, 28672\ns_add_u32 {sW1s}, {sW1s}, s54\ns_add_u32 {sW1s}, {sW1s}, 128')
def att_setup(helper):
    vL = vLa
    e(f's_mul_i32 s50, {sLAY}, 5\ns_mul_i32 s51, {sMODE}, {ASET}\ns_mul_i32 s50, s50, s51\ns_add_u32 s50, s50, {AB}')
    for r_ in (sAO, sAX1, sAH, sAX2): e(f's_add_u32 s50, s50, s51\ns_mov_b32 {r_}, s50')
    lane(vL)
    e(f'v_lshlrev_b32 v{vD}, 4, v{vL}\nv_mov_b32 v{vI}, 0xdddddddd')
    att_consts()
    e(f's_bfe_u32 s45, {sW}, 0x10001\ns_lshl_b32 s46, {sG}, 1\ns_add_u32 s45, s45, s46\ns_mul_i32 s45, s45, {ARENA}')
    e(f's_lshl_b32 s47, {sW}, 10\ns_add_u32 s67, s47, {KV0 + STG}\ns_mul_i32 s68, {sW}, {2 * VP}\ns_add_u32 s68, s68, {KV0 + STG + 8192}')
    e(f's_lshl_b32 s50, {sG}, 3\ns_lshr_b32 s51, {sR}, 2\ns_add_u32 s50, s50, s51\ns_lshl_b32 s50, s50, 9\ns_add_u32 s50, s50, {FL_GLB}\nv_lshl_add_u32 v{vPA}, v{vL}, 3, s50')
    addr_128(vW1, 3584); addr_128(vWO, 1024)
    e(f's_lshl_b32 s44, {sR}, 16\ns_add_u32 s44, s44, {sK}\ns_add_u32 s44, s44, s47')
    s_fb('s54'); e(f's_and_b32 s55, {sR}, 7\ns_lshl_b32 s55, s55, 7\ns_mov_b32 s71, 0\ns_lshl_b32 {sKC}, {sG}, 13')
    att_ptrs()
    if not helper:
        e(f's_mul_i32 {sPK}, {sW}, 28672\ns_add_u32 {sPK}, {sPK}, s54\ns_add_u32 {sPK}, {sPK}, 128')
        e(f's_lshr_b32 s50, {sR}, 3\ns_lshl_b32 s50, s50, 1\ns_lshl_b32 s51, {sG}, 3\ns_add_u32 s50, s50, s51\ns_and_b32 s51, {sW}, 1\ns_add_u32 s50, s50, s51\ns_lshl_b32 s50, s50, 15')
        e(f's_lshr_b32 s51, {sW}, 1\ns_lshl_b32 s51, s51, 6\ns_add_u32 s50, s50, s51\ns_add_u32 s50, s50, s55')
        e(f'v_and_b32 v4, 31, v{vL}\nv_lshrrev_b32 v5, 5, v{vL}\nv_lshlrev_b32 v4, 10, v4\nv_lshl_add_u32 v4, v5, 3, v4\nv_add_u32 v{vRS}, s50, v4')
        return
    e(f's_and_b32 s50, {sW}, 1\ns_mul_i32 s50, s50, 896\ns_bfe_u32 s51, {sW}, 0x10001\ns_lshl_b32 s51, s51, 3\ns_add_u32 s50, s50, s51\ns_add_u32 s50, s50, 368\ns_lshl_b32 s50, s50, 10\ns_add_u32 {sPK}, s50, s55')
    e(f's_and_b32 s52, {sW}, 3\nv_mov_b32 v{vRS}, 0x7f000000')
    def share_addr(v, share, shift, stride, cut, add, col):
        e(f's_lshr_b32 s50, {sR}, {shift}\ns_mul_i32 s50, s50, {share}\ns_mul_i32 s51, s52, {share // 4}\ns_add_u32 s50, s50, s51\nv_add_u32 v{v}, s50, v{vL}')
        e(f'v_cmp_gt_u32 vcc, {cut}, v{v}\nv_add_u32 v4, {add}, v{v}\ns_nop 0\nv_cndmask_b32 v{v}, v4, v{v}, vcc\nv_mul_u32_u24 v{v}, {stride}, v{v}\nv_add_u32 v{v}, {col}, v{v}')
        e(f'v_cmp_gt_u32 vcc, {share // 4}, v{vL}\nv_mov_b32 v4, 0x7f000000\ns_nop 0\nv_cndmask_b32 v{v}, v4, v{v}, vcc')
    share_addr(vA1, 88, 4, 3584, 0, 336, 's54'); share_addr(vA2, 184, 3, 1024, 368, 528, 's55')
    e(f's_lshr_b32 s50, {sR}, 4\ns_lshl_b32 s51, {sG}, 1\ns_add_u32 s50, s50, s51\ns_mul_i32 s50, s50, {ARENA}\ns_and_b32 s51, {sR}, 15\ns_mul_i32 s51, s51, {ALINES * 8 * 128}\ns_add_u32 s50, s50, s51')
    e(f's_mul_i32 s51, s52, {ALINES * 256}\ns_add_u32 s50, s50, s51\ns_add_u32 s50, s50, {AB}\ns_lshl_b32 s51, {sQT}, 30\ns_add_u32 s50, s50, s51\nv_lshl_add_u32 v{vT}, v{vL}, 8, s50')
    e(f'v_cmp_gt_u32 vcc, {ALINES}, v{vL}\nv_mov_b32 v4, 0x7f000000\ns_nop 0\nv_cndmask_b32 v{vT}, v4, v{vT}, vcc')
    e(f's_lshl_b32 s46, {sG}, 1\ns_mul_i32 s46, s46, {ARENA}\ns_mul_i32 s50, s52, {HT}\ns_add_u32 s46, s46, s50\ns_lshl_b32 s50, {sR}, 10\ns_add_u32 s46, s46, s50\ns_add_u32 s46, s46, {sAQ}')
    flag_wait_prep('att', vFW, 4)

def attention():
    vL = vLa
    DONE = g.lab('ADONE')
    def chunks():
        e(f's_cmp_lt_u32 {sW}, 6\ns_cselect_b32 s51, {ONES}, 0\ns_cselect_b32 s50, 0, 16')
        e('v_mov_b32 v0, s51\nv_mov_b32 v1, s51\nv_mov_b32 v2, s51\nv_mov_b32 v3, s51')
        e(f'v_lshrrev_b32 v4, 4, v{vL}\ns_and_b32 s51, {sW}, 1\ns_lshl_b32 s51, s51, 2\nv_add_u32 v4, s51, v4\nv_mul_u32_u24 v4, {STG}, v4')
        e(f'v_and_b32 v5, 15, v{vL}\nv_mul_u32_u24 v5, {VP}, v5\nv_add3_u32 v4, v4, v5, s50\nds_write_b128 v4, v[0:3] offset:{KV0 + 8192 + 512}')
    NG = g.lab('ANG'); NQ = g.lab('ANQ'); NC = g.lab('ANC'); NJ = g.lab('ANJ')
    gtest = f'v_min_u32 v{vPD}, v{vPD}, v{vPD+1}\nv_cmp_gt_u32 vcc, {sGEP}, v{vPD}'
    gload = f'global_load_dwordx2 v[{vPD}:{vPD+1}], v{vPA}, {WSP} sc1'
    e(f's_cmp_ge_u32 {sW}, 4\ns_cbranch_scc1 {NC}')
    att_setup(False)
    e(f's_branch {NJ}\n{NC}:')
    e(f's_cmp_eq_u32 {sQT}, 0\ns_cbranch_scc1 {NQ}')
    bounded_poll(gload, gtest)
    e(f's_branch {NG}\n{NQ}:')
    flag_wait(P_QKV, vFW, 8)
    e(f'{NG}:'); g.reset_track()
    stamp('att_start', 1)
    for hf in range(2):
        e(f's_and_b32 s52, {sW}, 3\ns_lshl_b32 s50, s52, 10\ns_add_u32 m0, s50, {4096 * hf}\ns_mul_i32 s52, s52, {2 * VP}')
        e(f'buffer_load_dwordx4 v{vD}, {SWS}, s46 offen sc1 lds')
        e(f's_add_u32 m0, s50, {KV0 + 4096 * hf}\ns_add_u32 s48, s46, {A_K}')
        e(f'buffer_load_dwordx4 v{vD}, {SWS}, s48 offen sc1 lds')
        e(f's_add_u32 m0, s52, {KV0 + 8192 + 8 * VP * hf}\ns_add_u32 s48, s46, {A_V}\ns_mov_b32 exec_hi, 0')
        e(f'buffer_load_dwordx4 v{vD}, {SWS}, s48 offen sc1 lds')
        e(f's_add_u32 m0, s52, {KV0 + 8192 + 8 * VP * hf + VP - 512}\ns_add_u32 s46, s46, {ARENA}')
        e(f'buffer_load_dwordx4 v{vD}, {SWS}, s48 offen offset:512 sc1 lds')
        e('s_mov_b32 exec_hi, -1')
    chunks()
    e('s_waitcnt vmcnt(0) lgkmcnt(0)')
    e(f'{NJ}:'); g.reset_track()
    barrier()
    e(f's_and_b32 s50, {sW}, 3\ns_lshl_b32 s50, s50, 11\nv_add_u32 v4, s50, v{vD}\nds_read_b128 {vr(Q2[0])}, v4\nds_read_b128 {vr(Q2[1])}, v4 offset:1024')
    tags = []
    def kv_issue(s, tag=True):
        if s > 7: return
        f = ' sc1' if s == 0 else KVNT
        if s: e(f's_add_u32 {sKC}, {sKC}, 8192\ns_and_b32 {sKC}, {sKC}, 0xffff\ns_mov_b32 m0, s67\ns_add_u32 s48, {sKC}, s44')
        else: e('s_mov_b32 m0, s67\ns_nop 0')
        e(f'buffer_load_dwordx4 v{vD}, {SWS}, s48 offen{f} lds')
        e(f's_mov_b32 m0, s68\ns_mov_b32 exec_hi, 0\ns_add_u32 s67, s67, {STG}')
        if s: e(f's_add_u32 s49, s48, {2 * MB}')
        e(f'buffer_load_dwordx4 v{vD}, {SWS}, s49 offen{f} lds')
        e(f's_add_u32 m0, s68, {VP - 512}\ns_add_u32 s68, s68, {STG}')
        e(f'buffer_load_dwordx4 v{vD}, {SWS}, s49 offen offset:512{f} lds')
        e('s_mov_b32 exec_hi, -1')
        if tag: tags.extend([s, s, s])
    base = {'K': 0, 'V': 0}
    def landed(s):
        n = len(tags) - 1 - max(i for i, x in enumerate(tags) if x == s)
        g.force_wait(f'vmcnt({n})'); barrier()
    def kread(kt):
        if kt > 31: return []
        return [f'ds_read_b128 {vr(KF)}, v{vK} offset:{(kt // 4) * STG + (kt % 4) * 1024 - base["K"]}']
    def vread(kt, half):
        if kt > 31: return []
        return [f'ds_read_b128 {vr(VF[half])}, v{vV} offset:{(kt // 4) * STG + (2 * (kt % 4) + half) * VP - base["V"]}']
    def qk(t): return f'v_mfma_f32_32x32x16_bf16 {vr(S[t & 1], 16)}, {vr(KF)}, {vr(Q2[t & 1])}, 0'
    def pv(t, half): return f'v_smfmac_f32_32x32x32_bf16 {vr(O2[t & 1], 16)}, {vr(VF[half])}, {vr(S[t & 1] + 8 * half, 8)}, v{vI}'
    def attempt(final):
        SK = g.lab('APS'); RT = g.lab('APR')
        e(f's_cmp_lg_u32 s71, 0\ns_cbranch_scc1 {SK}')
        if final: bounded_poll(gload, gtest)
        else:
            g.raw('s_waitcnt vmcnt(0)')
            for x in gtest.split('\n'): g.raw(x)
            g.raw('s_nop 0'); e(f's_cbranch_vccnz {RT}')
        kv_issue(1, False)
        e('s_mov_b32 s71, 1')
        if not final:
            e(f's_branch {SK}')
            e(f'{RT}:')
            g.raw(gload)
        e(f'{SK}:')
        g.vm = []
    def w1_pref(n, role=None):
        e(f's_mov_b32 m0, {sW1d}\ns_add_u32 {sW1d}, {sW1d}, 8192')
        if n == 58 and role != 'c': e(f's_cmp_ge_u32 {sW}, 6\ns_cselect_b32 s50, {64 * 28672 + 128}, 0\ns_sub_u32 {sW1s}, {sW1s}, s50')
        if n == 66: e(f's_cmp_lt_u32 {sW}, 6\ns_cselect_b32 s50, {64 * 28672 + 128}, 0\ns_sub_u32 {sW1s}, {sW1s}, s50')
        e(f'buffer_load_dwordx4 v{vW1}, {SW1}, {sW1s} offen lds\ns_add_u32 {sW1s}, {sW1s}, {8 * 28672}'); tags.append(-1)
    def wo_pref(k):
        e(f's_mov_b32 m0, {sWOd}\ns_add_u32 {sWOd}, {sWOd}, 8192')
        e(f'buffer_load_dwordx4 v{vWO}, {SWO}, {sWOs} offen lds\ns_add_u32 {sWOs}, {sWOs}, 65536'); tags.append(-1)
    def dummy(srd, v, f=''):
        g.raw(f'buffer_load_dword v{DUM}, v{v}, {srd}, 0 offen{f}'); tags.append(-1)
    def layer0(f):
        X = g.lab('AL0')
        e(f's_cmp_lg_u32 {sLAY}, 0\ns_cbranch_scc1 {X}'); f(); e(f'{X}:')
    def w2_part(m0_, m1_):
        for m in range(m0_, m1_):
            g.raw(f'buffer_load_dwordx4 {vr(WR + 4 * m)}, v{vWO}, {SW2}, {sPK} offen'); e(f's_add_u32 {sPK}, {sPK}, 16384')
    def r_part(m):
        g.raw(f'buffer_load_dwordx4 {vr(RQ[m])}, v{vW1}, {SW1}, {sPK} offen'); e(f's_add_u32 {sPK}, {sPK}, {4 * 28672}'); tags.append(-1)
    def res0():
        for q in range(4): g.raw(f'buffer_load_dwordx2 v[{RES + 2*q}:{RES + 2*q + 1}], v{vRS}, {SX}, 0 offen offset:{16 * q}')
    def loop(role):
        h = role == 'h'
        del tags[:]; base['K'] = base['V'] = 0
        jobs = {}
        def job(t, f): jobs.setdefault(t, []).append(f)
        for k in range(4): job(30 + 2 * k + h, lambda k=k: (wo_pref(2 * k), wo_pref(2 * k + 1)))
        for t, ns in ((38, (50,)), (46, (58, 66)), (54, (74, 82)), (58, (90, 98))): job(t + h, lambda ns=ns: [w1_pref(n, role) for n in ns])
        if h:
            for k, t in enumerate((15, 23, 41)): job(t, lambda k=k: layer0(lambda: w2_part(11 * k, 11 * k + 11)))
            for t in (10, 26, 42, 56): job(t, lambda: (dummy(SWS, vT, ' sc1'), dummy(SWS, vT, ' offset:128 sc1')))
            job(int(OPT.get('tw1', 40)), lambda: dummy(SW1, vA1)); job(int(OPT.get('tw2', 48)), lambda: dummy(SW2, vA2))
        else:
            for k in range(13): job(40 + k // 3 * 2 + (k >= 6), lambda k=k: r_part(k))
            job(53, lambda: layer0(res0))
        run(kread(0) + vread(0, 0) + vread(0, 1))
        g.vm = []
        g.raw(gload)
        e(qk(0))
        e('s_nop 11')
        for t in range(64):
            s0 = S[t & 1]; kt = t >> 1
            ex = [f'v_exp_f32 v{s0 + r}, v{s0 + r}' for r in range(16)]
            e(ex[0]); e(ex[1])
            if t: e(pv(t - 1, 1))
            if t & 1 == 0 and t: run(vread(kt, 1))
            if 1 <= t <= 6:
                attempt(t == 6)
                if t == 6:
                    tags.extend([1, 1, 1]); kv_issue(2)
            if t == 7:
                landed(1); lstamp(1)
                run(kread(4))
            if t % 8 == 6 and t > 8 or t == 58:
                s = t // 8 + 1
                if t < 58: landed(s)
                elif t == 58: barrier()
                if 'lean' not in OPT and t < 62: lstamp(s)
            if t % 8 == h and 8 <= t < 48: kv_issue(t // 8 + 2)
            if t & 1: g.wait_for(vr(KF))
            else: g.wait_for(vr(VF[0]))
            run(ex[2:5])
            if t < 63: e(qk(t + 1))
            if t & 1 == 0:
                if t % 8 == 6 and (t // 8) in (2, 5):
                    e(f'v_add_u32 v{vK}, {3 * STG}, v{vK}'); base['K'] += 3 * STG
                if t != 6: run(kread(kt + 1))
            run(jobs.get(t, []))
            run(ex[5:10])
            e(pv(t, 0))
            if t & 1:
                if t % 8 == 7 and (t // 8) in (2, 5):
                    e(f'v_add_u32 v{vV}, {3 * STG}, v{vV}'); base['V'] += 3 * STG
                run(vread(kt + 1, 0))
            else: g.wait_for(vr(VF[1]))
            run(ex[10:16])
        e('s_nop 1')
        e(pv(63, 1))
        snd = O2[0] if h else O2[1]
        e(f's_lshl_b32 s50, {sW}, 11\ns_add_u32 s50, s50, {RED}\nv_add_u32 v0, s50, v{vD}\ns_xor_b32 s50, s50, 8192\nv_add_u32 v1, s50, v{vD}')
        e(f's_lshl_b32 s50, {sW}, 8\ns_add_u32 s50, s50, {LSUM}\nv_lshl_add_u32 v2, v{vL}, 2, s50\ns_xor_b32 s50, s50, 1024\nv_lshl_add_u32 v3, v{vL}, 2, s50')
        e('s_nop 1')
        e(f'ds_write_b128 v0, {vr(snd)}\nds_write_b128 v0, {vr(snd + 4)} offset:1024\nds_write_b32 v2, v{snd + 8}')
        if h:
            for r in range(9): e(f'v_mov_b32 v{O + r}, v{O2[1] + r}')
            for r in range(4): e(f'v_mov_b32 v{Q2[0] + r}, v{Q2[1] + r}')
    LH = g.lab('ALH'); LJ = g.lab('ALJ')
    lstamp(0)
    save = (list(g.lg), g.smem_out)
    e(f's_cmp_ge_u32 {sW}, 4\ns_cbranch_scc1 {LH}')
    loop('c')
    e(f's_branch {LJ}\n{LH}:')
    g.lg, g.smem_out = save
    loop('h')
    e(f'{LJ}:')
    e(f's_and_b32 s46, {sW}, 1\ns_lshl_b32 s46, s46, 1\ns_lshr_b32 s47, {sW}, 2\ns_add_u32 s46, s46, s47\ns_lshl_b32 s46, s46, 15\ns_lshl_b32 s47, {sR}, 10\ns_add_u32 s46, s46, s47\ns_add_u32 s46, s46, s45\ns_add_u32 s46, s46, {sAO}\ns_add_u32 s46, s46, {A_O}')
    e(f'v_mov_b32 v13, {fl(2.0**-30)}\nv_mov_b32 v14, {fl(2.0**64)}\nv_mov_b32 v15, 0x207')
    fs = flag_set(P_ATT, 90, 91, True)
    e('s_waitcnt lgkmcnt(0)')
    barrier()
    e(f'ds_read_b128 v[4:7], v1\nds_read_b128 v[8:11], v1 offset:1024\nds_read_b32 v12, v3')
    for r in range(9): e(f'v_add_f32 v{O + r}, v{O + r}, v{4 + r}')
    stamp('att_loop', 0)
    if 'fine' in OPT:
        X = g.lab('FIN')
        e(f's_and_b32 s50, {sW}, 3\ns_cmp_lg_u32 s50, {OPT.get("fw", 3)}\ns_cbranch_scc1 {X}\ns_cmp_ge_u32 {sW}, 4\ns_cbranch_scc1 {X}')
        lstamp_flush(['att_b0', 'att_b1', 'att_b2', 'att_drain', 'att_seen', 'att_b5', 'att_b6', 'att_b7', 'att_b8'])
        e(f'{X}:')
    else: lstamp_flush([f'att_b{i}' for i in range(9)])
    NORM = g.lab('ANRM'); SLOW = g.lab('ASLW')
    e(f'v_mov_b32 v{O + 9}, v{O + 8}\ns_nop 1\nv_permlane32_swap_b32 v{O + 8}, v{O + 9}')
    e(f'v_cmp_nle_f32 s[50:51], v13, v{O + 8}\nv_cmp_nge_f32 vcc, v14, v{O + 8}\ns_nop 0\ns_or_b64 s[50:51], s[50:51], vcc')
    e(f'v_add_f32 v4, abs(v{O}), abs(v{O+1})\nv_add_f32 v5, abs(v{O+2}), abs(v{O+3})\nv_add_f32 v6, abs(v{O+4}), abs(v{O+5})\nv_add_f32 v7, abs(v{O+6}), abs(v{O+7})')
    e('v_add_f32 v4, v4, v5\nv_add_f32 v6, v6, v7\nv_add_f32 v4, v4, v6\nv_cmp_class_f32 vcc, v4, v15\ns_nop 0\ns_or_b64 s[50:51], s[50:51], vcc')
    if FORCE_SLOW: e('s_mov_b64 s[50:51], -1')
    e(f's_cmp_lg_u64 s[50:51], 0\ns_cbranch_scc1 {SLOW}')
    e(f'{NORM}:')
    e(f'v_rcp_f32 v0, v{O + 8}\ns_nop 0')
    for r in range(8): e(f'v_mul_f32 v{O + r}, v0, v{O + r}')
    run(cvt_half(O))
    store_act([f'buffer_store_dwordx4 {vr(O)}, v{vD}, {SWS}, s46 offen'])
    e('s_waitcnt vmcnt(0)')
    fs()
    barrier()
    e(f's_branch {DONE}')
    e(f'{SLOW}:')
    e(f's_lshl_b32 s44, {sR}, 16\ns_add_u32 s44, s44, {sK}')
    e(f'v_and_b32 v4, 31, v{vL}\nv_lshrrev_b32 v5, 5, v{vL}\nv_lshlrev_b32 v5, 8, v5\nv_lshl_add_u32 v{vV}, v4, 4, v5\nv_cmp_eq_u32 vcc, 16, v4\nv_mov_b32 v5, {ONES}\ns_nop 0\nv_cndmask_b32 v5, 0, v5, vcc')
    for r in range(8): e(f'v_mov_b32 v{VF[0] + r}, v5')
    for r in range(16): e(f'v_mov_b32 v{O + r}, 0')
    e(f'v_mov_b32 v{NM}, 0xff800000')
    for ps in range(2):
        L = g.lab('AMX')
        e('s_mov_b32 s50, 0\ns_mov_b32 s48, s44')
        e(f'{L}:')
        e(f'buffer_load_dwordx4 {vr(KF)}, v{vD}, {SWS}, s48 offen')
        if ps:
            e(f's_add_u32 s49, s48, {2 * MB}\ns_mov_b32 exec_lo, 0xffff\ns_mov_b32 exec_hi, 0xffff')
            e(f'buffer_load_dwordx4 {vr(VF[0])}, v{vV}, {SWS}, s49 offen\nbuffer_load_dwordx4 {vr(VF[1])}, v{vV}, {SWS}, s49 offen offset:512')
            e('s_mov_b64 exec, -1')
        e('s_add_u32 s48, s48, 1024\ns_add_u32 s50, s50, 1\ns_waitcnt vmcnt(0)')
        e(f'v_mfma_f32_32x32x16_bf16 {vr(S[0], 16)}, {vr(KF)}, {vr(Q2[0])}, {vr(NM, 16) if ps else 0}\ns_nop 12')
        if ps == 0:
            for r in range(0, 16, 2): e(f'v_max3_f32 v{NM}, v{NM}, v{r}, v{r + 1}')
        else:
            for r in range(16): e(f'v_exp_f32 v{r}, v{r}')
            e('s_nop 1'); e(pv(0, 0)); e(pv(0, 1))
        e(f's_cmp_lt_u32 s50, 64\ns_cbranch_scc1 {L}')
        if ps == 0:
            e(f'v_mov_b32 v{NM+1}, v{NM}\ns_nop 1\nv_permlane32_swap_b32 v{NM}, v{NM+1}\nv_max_f32 v{NM}, v{NM}, v{NM+1}\nv_sub_f32 v{NM}, 0, v{NM}')
            for r in range(1, 16): e(f'v_mov_b32 v{NM + r}, v{NM}')
    e(f's_nop 12\nv_mov_b32 v{O + 9}, v{O + 8}\ns_nop 1\nv_permlane32_swap_b32 v{O + 8}, v{O + 9}')
    e(f's_branch {NORM}')
    e(f'{DONE}:'); g.reset_track()

def proj_compute(kind):
    A = 0; ACC = 128; BR = 176; vB = 208; vL = 214; T = 216
    wo = kind == 'wo'
    NS = 16 if wo else 56
    e('s_setprio 1')
    lane(vL)
    e(f's_lshr_b32 s44, {sR}, 3\ns_lshl_b32 s44, s44, 1\ns_lshl_b32 s45, {sG}, 3\ns_add_u32 s44, s44, s45\ns_and_b32 s45, {sW}, 1\ns_add_u32 s44, s44, s45')
    e(f's_lshr_b32 s45, {sW}, 1\ns_and_b32 s47, {sR}, 7\ns_lshl_b32 s47, s47, 1\ns_add_u32 s47, s47, s45')
    e(f'v_lshlrev_b32 v{T}, 4, v{vL}')
    e(f's_lshr_b32 s71, s44, 2\ns_mul_i32 s71, s71, {ARENA}\ns_and_b32 s53, s44, 3')
    if wo: e(f's_lshl_b32 s46, s53, 15\ns_lshl_b32 s48, s45, 14\ns_add_u32 s46, s46, s48\ns_add_u32 s46, s46, {sAO}\ns_add_u32 s46, s46, {A_O}')
    else: e(f's_mul_i32 s46, s53, {HT}\ns_mul_i32 s48, s45, {56 * 1024}\ns_add_u32 s46, s46, s48\ns_add_u32 s46, s46, {sAH}')
    e('s_add_u32 s46, s46, s71')
    for k in range(8): e(f'v_lshlrev_b32 v{ACC + 2*k}, 16, v{RES + k}\nv_and_b32 v{ACC + 2*k + 1}, 0xffff0000, v{RES + k}')
    tr_lane_parts(vL, T + 4)
    h_ = T + 6
    tr128(vB, T + 4, 's45')
    if wo: e(f's_lshl_b32 s48, s45, 15\nv_add_u32 v{vB}, s48, v{vB}\nv_add_u32 v{vB+1}, s48, v{vB+1}')
    else:
        e(f's_lshl_b32 s48, s45, 15\ns_add_u32 s49, s48, {W2Y}\nv_add_u32 v{vB+2}, s49, v{vB}\nv_add_u32 v{vB+3}, s49, v{vB+1}')
        e(f's_add_u32 s49, s48, {W2Z}\nv_add_u32 v{vB+4}, s49, v{vB}\nv_add_u32 v{vB+5}, s49, v{vB+1}')
        e(f's_mul_i32 s48, s45, 14336\nv_add_u32 v{vB}, s48, v{vB}\nv_add_u32 v{vB+1}, s48, v{vB+1}')
    e(f's_lshl_b32 s48, {sW}, 12\ns_add_u32 s48, s48, {RED}\nv_add_u32 v{T+1}, s48, v{T}\ns_xor_b32 s48, s48, 8192\nv_add_u32 v{T+2}, s48, v{T}')
    flag_wait_prep(kind, T + 8, T + 9); flag_wait(P_ATT if wo else P_W1, T + 8, T + 9)
    stamp(kind + '_start', 0)
    al = ALoader(A, 0, 's46', NS, vaddr=T)
    al.issue(AINIT)
    nfr = [0]; regs = {}
    def where(ks):
        if wo or ks < 7: return 0, ks
        if ks < 23: return 2, ks - 7
        if ks < 39: return 4, ks - 23
        if ks < 46: return 0, ks - 39
        return 2, ks - 46
    def issue(n):
        ks, j = divmod(n, 2)
        if ks >= NS: return
        if not wo and j == 0 and ks in (17, 39):
            e('s_waitcnt lgkmcnt(0)'); barrier()
        b = BR + 4 * (nfr[0] % 8); nfr[0] += 1; regs[n] = b
        a, slot = where(ks)
        e(trrd(b, vB + a + j, slot * 2048, 1024))
    AH = 6
    for n in range(AH): issue(n)
    for n in range(2 * NS):
        ks, j = divmod(n, 2)
        acc = ACC + 16 * j
        li = 2 * NS - 2
        if n >= li: j = 1 - j; acc = ACC + 16 * j
        c = '0' if (ks == 0 and j == 1) else vr(acc, 16)
        e(f'v_mfma_f32_32x32x16_bf16 {vr(acc,16)}, {vr(regs[2 * ks + j])}, {vr(A + 4 * (ks % 32))}, {c}')
        issue(n + AH)
        if al.k < NS and n & 1:
            al.issue(1)
            if wo and al.k == NS: barrier()
    stamp(kind + '_loop', 0)
    e(f's_add_u32 s71, s71, {sAX1 if wo else sAX2}')
    e(f's_lshl_b32 s46, s53, 15\ns_lshl_b32 s48, s47, 11\ns_add_u32 s46, s46, s48\ns_add_u32 s46, s46, s71\ns_add_u32 s46, s46, {A_X}')
    e(f's_lshl_b32 s49, s53, 12\ns_lshl_b32 s48, s47, 8\ns_add_u32 s49, s49, s48\ns_add_u32 s49, s49, s71\ns_add_u32 s49, s49, {A_ST}')
    for q in range(4): e(f'ds_write_b128 v{T+1}, {vr(ACC + 16 + 4*q)} offset:{1024 * q}')
    for k in range(4): e(f'v_mov_b32 v{T+8+k}, 0')
    e(f'v_lshlrev_b32 v{T+1}, 2, v{vL}')
    e('s_waitcnt lgkmcnt(0)')
    barrier()
    for q in range(4): e(f'ds_read_b128 {vr(ACC + 16 + 4*q)}, v{T+2} offset:{1024 * q}')
    for q in range(4):
        for r in range(4 * q, 4 * q + 4): e(f'v_add_f32 v{ACC + r}, v{ACC + r}, v{ACC + 16 + r}')
        for k in range(2 * q, 2 * q + 2): e(f'v_cvt_pk_bf16_f32 v{RES + k}, v{ACC + 2*k}, v{ACC + 2*k + 1}')
    def act_out():
        store_act([f'buffer_store_dwordx4 {vr(RES)}, v{T}, {SWS}, s46 offen', f'buffer_store_dwordx4 {vr(RES + 4)}, v{T}, {SWS}, s46 offen offset:1024'])
        for k in range(8): e(f'v_dot2c_f32_bf16 v{T+8+(k&1)}, {ONES}, v{RES + k}\nv_dot2c_f32_bf16 v{T+10+(k&1)}, v{RES + k}, v{RES + k}')
        e(f's_nop 2\nv_add_f32 v{T+8}, v{T+8}, v{T+9}\nv_add_f32 v{T+10}, v{T+10}, v{T+11}\ns_nop 1')
        e(f'v_permlane32_swap_b32 v{T+8}, v{T+10}\nv_add_f32 v{T+8}, v{T+8}, v{T+10}')
        store_act([f'buffer_store_dword v{T+8}, v{T+1}, {SWS}, s49 offen'])
    if wo: act_out()
    else:
        F = g.lab('W2F'); D = g.lab('W2D')
        e(f's_cmp_lg_u32 {sLAY}, 0\ns_cbranch_scc1 {F}')
        act_out()
        e(f's_branch {D}')
        e(f'{F}:')
        e(f'v_and_b32 v{T+1}, 31, v{vL}\nv_lshlrev_b32 v{T+1}, 10, v{T+1}\nv_lshl_add_u32 v{T+1}, v{h_}, 4, v{T+1}')
        e('s_lshl_b32 s46, s44, 15\ns_lshl_b32 s48, s47, 6\ns_add_u32 s46, s46, s48')
        e(f'v_permlane32_swap_b32 v{RES}, v{RES+2}\nv_permlane32_swap_b32 v{RES+1}, v{RES+3}\nv_permlane32_swap_b32 v{RES+4}, v{RES+6}\nv_permlane32_swap_b32 v{RES+5}, v{RES+7}')
        e(f'buffer_store_dwordx4 {vr(RES)}, v{T+1}, {SOUT}, s46 offen\nbuffer_store_dwordx4 {vr(RES+4)}, v{T+1}, {SOUT}, s46 offen offset:32')
        e(f'{D}:')
    stamp(kind + '_st', 0)
    e('s_setprio 0')
    if wo:
        e(f's_lshl_b32 s48, {sW}, 10\ns_add_u32 s48, s48, {W1R}\nv_add_u32 v{T+3}, s48, v{T}')
        for m in range(8): e(f'ds_write_b128 v{T+3}, {vr(RQ[m])} offset:{4096 * m}')
    fs = flag_set(P_WO if wo else P_W2, T + 8, T + 9)
    e('s_waitcnt vmcnt(0)')
    fs()
    barrier()
    if wo:
        X = g.lab('WRX')
        for m in range(8, 12): e(f'ds_write_b128 v{T+3}, {vr(RQ[m])} offset:{4096 * m}')
        e(f's_cmp_ge_u32 {sW}, 2\ns_cbranch_scc1 {X}')
        e(f'ds_write_b128 v{T+3}, {vr(RQ[12])} offset:{4096 * 12}')
        e(f'{X}:')
        e('s_waitcnt lgkmcnt(0)')

def wo_phase():
    LH = g.lab('OH'); LD = g.lab('OD'); LE = g.lab('OE')
    e(f's_cmp_ge_u32 {sW}, 4\ns_cbranch_scc1 {LH}')
    proj_compute('wo')
    e(f's_branch {LE}')
    e(f'{LH}:'); g.reset_track()
    colsum_w1(0)
    e(f's_cmp_ge_u32 {sW}, 5\ns_cbranch_scc1 {LD}')
    barrier(); barrier(); barrier()
    e(f's_branch {LE}')
    e(f'{LD}:'); g.reset_track()
    barrier()
    dma_w1(106, 128)
    N2 = g.lab('ON')
    barrier()
    e('s_waitcnt vmcnt(0)')
    barrier()
    e(f'{LE}:'); g.reset_track()

def w2_phase():
    LH = g.lab('TH'); LD = g.lab('TD'); LE = g.lab('TE'); N = g.lab('TN'); J = g.lab('TJ')
    e(f's_cmp_ge_u32 {sW}, 4\ns_cbranch_scc1 {LH}')
    proj_compute('w2')
    e(f's_branch {LE}')
    e(f'{LH}:'); g.reset_track()
    barrier()
    w2_regs_put('S')
    barrier()
    e(f's_cmp_lg_u32 {sLAY}, 0\ns_cbranch_scc1 {N}\ns_cmp_eq_u32 {sW}, 4\ns_cbranch_scc1 {N}')
    addr_qkvB(sR); dma_qkvB(10, 21); dma_qkvB(27, 31)
    e(f'{N}:')
    barrier()
    barrier()
    e(f'{LE}:'); g.reset_track()

def w1_compute():
    A = 0; ACC = 128; BR = 192; vB = 216; vL = 224; vA_, vA2, vo = 225, 226, 227; T = 228; EX = 232; EW = [236, 240]
    IDLE = g.lab('W1I'); END = g.lab('W1E')
    barrier()
    lane(vL)
    e(f's_and_b32 s47, {sR}, 15\ns_cmp_ge_u32 s47, 14\ns_cbranch_scc1 {IDLE}')
    e('s_setprio 1')
    e(f's_lshr_b32 s44, {sR}, 4\ns_lshl_b32 s45, {sG}, 1\ns_add_u32 s44, s44, s45\ns_mul_i32 s44, s44, {ARENA}')
    e(f'v_lshlrev_b32 v244, 2, v{vL}\nv_lshlrev_b32 v{vo}, 4, v{vL}')
    e(f's_add_u32 s55, s44, {sAX1}\ns_lshl_b32 s45, {sW}, 12\ns_add_u32 s45, s45, s55\ns_add_u32 s45, s45, {A_ST}\ns_lshl_b32 s48, {sW}, 15\ns_add_u32 s55, s55, s48\ns_add_u32 s55, s55, {A_X}')
    tr_lane_parts(vL, T); tr128(vB, T, 0)
    for k in range(2):
        e(f'v_add_u32 v{vB+2+k}, {W1R}, v{vB+k}\nv_add_u32 v{vB+6+k}, {W1R + 32768}, v{vB+k}\nv_add_u32 v{vB+4+k}, {W1P + 32768}, v{vB+k}\nv_add_u32 v{vB+k}, {W1P}, v{vB+k}')
    e(f'v_and_b32 v245, 31, v{vL}\nv_lshlrev_b32 v245, 2, v245\nv_add_u32 v245, {CS1}, v245')
    flag_wait_prep('x', T, T + 1); flag_wait(P_WO, T, T + 1)
    stamp('w1_start', 0)
    ST = ACC + 32
    stats_load('s45', ST, 244)
    al = ALoader(A, 0, 's55', 32, vaddr=vo)
    al.issue(AINIT)
    pre = stats_reduce(ST, T, T + 1) + stats_finish(T, T + 1, vA_, EX, vL) + [f'v_mul_f32 v{vA2}, {fl(-LOG2E)}, v{vA_}', f'v_rcp_f32 v{vA_}, v{vA_}']
    e(f's_mul_i32 s46, {sW}, {HT}\ns_lshl_b32 s48, s47, 13\ns_add_u32 s46, s46, s48\ns_add_u32 s46, s46, s44\ns_add_u32 s46, s46, {sAH}\ns_add_u32 s48, s46, 4096')
    seq = [(ks, j) for ks in range(32) for j in range(2)] + [(ks, 2) for ks in range(32)] + [(ks, 3) for ks in range(32)]
    regs = {}; nfr = [0]; AH = 5
    def issue(n):
        if n >= len(seq): return
        if n == 64:
            e('s_waitcnt lgkmcnt(0)'); barrier()
            e(f'ds_read_b32 v{EW[0]+2}, v245\nds_read_b32 v{EW[1]+2}, v245 offset:128')
        ks, j = seq[n]
        b = BR + 4 * (nfr[0] % 6); nfr[0] += 1; regs[n] = b
        e(trrd(b, vB + j + 4 * (ks // 16), (ks % 16) * 2048, 1024))
    for n in range(AH): issue(n)
    def mm(j, w, x, c):
        acc = ACC + 16 * j
        return f'v_mfma_f32_32x32x16_bf16 {vr(acc,16)}, {vr(w)}, {vr(x)}, {vr(acc,16) if c else 0}'
    slots = []
    for n, (ks, j) in enumerate(seq):
        def mf(n=n, ks=ks, j=j):
            e(mm(j, regs[n], A + 4 * ks, ks)); issue(n + AH)
            if al.k < 32 and n & 1:
                al.issue(1)
        slots.append([mf])
    def epi(j):
        acc = ACC + 16 * j; o = []
        for q in range(4):
            R = [acc + 4 * q + k for k in range(4)]
            for k in range(4): o.append(f'v_mul_f32 v{T + k}, v{vA2}, v{R[k]}')
            for k in range(4): o.append(f'v_exp_f32 v{T + k}, v{T + k}')
            for k in range(4): o.append(f'v_fma_f32 v{T + k}, v{T + k}, v{vA_}, v{vA_}')
            for k in range(4): o.append(f'v_rcp_f32 v{T + k}, v{T + k}')
            for k in range(4): o.append(f'v_mul_f32 v{R[k]}, v{R[k]}, v{T + k}')
            if q & 1: o += cvt_half(acc + 8 * (q >> 1))
        so = 's46' if j < 2 else 's48'
        o.append(lambda: store_act([f'buffer_store_dwordx4 {vr(acc)}, v{vo}, {SWS}, {so} offen offset:{2048 * (j & 1)}',
                                    f'buffer_store_dwordx4 {vr(acc + 8)}, v{vo}, {SWS}, {so} offen offset:{2048 * (j & 1) + 1024}']))
        return o
    merge(slots[:61], pre, start=8, per=2)
    merge(slots[61:64], ext_w(EW[0], 245, 0)[1:] + ext_w(EW[1], 245, 128)[1:], start=0, per=4)
    e('s_nop 0')
    e(mm(0, EW[0], EX, 1)); e(mm(1, EW[1], EX, 1))
    lstamp(0)
    f01 = ext_w(EW[0], 245, 256) + ext_w(EW[1], 245, 384) + epi(0) + epi(1); f2 = epi(2)
    cut = (len(f01) + len(f2)) // 2
    merge(slots[64:96], f01[:cut], start=0)
    e(mm(2, EW[0], EX, 1))
    lstamp(1)
    merge(slots[96:128], f01[cut:] + f2, start=0)
    e(mm(3, EW[1], EX, 1))
    barrier()
    stamp('w1_loop', 0)
    e('s_nop 10')
    run(epi(3))
    stamp('w1_st', 0)
    lstamp_flush(['w1_k', 'w1_t2'])
    e('s_setprio 0')
    fs = flag_set(P_W1, T, T + 1)
    e('s_waitcnt vmcnt(0)')
    fs()
    barrier()
    e(f's_branch {END}')
    e(f'{IDLE}:')
    for _ in range(3): barrier()
    e(f'{END}:')

def w1_phase():
    LH = g.lab('UH'); LD = g.lab('UD'); LE = g.lab('UE'); J = g.lab('UJ'); N = g.lab('UN')
    e(f's_cmp_ge_u32 {sW}, 4\ns_cbranch_scc1 {LH}')
    w1_compute()
    e(f's_branch {LE}')
    e(f'{LH}:'); g.reset_track()
    C = g.lab('UC')
    barrier()
    colsum_w1(1)
    barrier()
    e(f's_cmp_eq_u32 {sW}, 4\ns_cbranch_scc1 {J}')
    if 'nowarmq' not in OPT:
        e(f's_cmp_lg_u32 {sLAY}, 0\ns_cbranch_scc1 {C}')
        s_qkv_cols(sR); lane(9)
        e(f's_lshr_b32 s50, {sR}, 4\ns_cmp_eq_u32 s50, 0\ns_cselect_b32 s53, s53, s54\ns_sub_u32 s50, {sW}, 5\ns_mul_i32 s50, s50, 91\nv_add_u32 v10, s50, v9')
        for k in range(2):
            e(f'v_add_u32 v11, {64 * k}, v10\nv_cmp_le_u32 vcc, 160, v11\nv_add_u32 v12, 176, v11\ns_nop 0\nv_cndmask_b32 v11, v11, v12, vcc')
            e(f'v_cmp_le_u32 vcc, 432, v11\nv_add_u32 v12, 64, v11\ns_nop 0\nv_cndmask_b32 v11, v11, v12, vcc\nv_mul_u32_u24 v11, 3072, v11')
            if k: e('s_mov_b32 exec_hi, 0\ns_mov_b32 exec_lo, 0x7ffffff')
            g.raw(f'buffer_load_dword v60, v11, {SWQ}, s53 offen')
        e('s_mov_b64 exec, -1')
        e(f'{C}:')
    dma_w2('X')
    dma_w2('Y')
    e(f'{J}:')
    barrier()
    w2_regs_put('Z')
    e('s_waitcnt vmcnt(0)')
    barrier()
    e(f'{LE}:'); g.reset_track()

def main():
    K = NAME + '_kernel'
    e(f'{K}:')
    e('s_cmp_ge_u32 s2, 256\ns_cbranch_scc1 L_END')
    e('s_load_dwordx4 s[44:47], s[0:1], 0\ns_load_dwordx2 s[48:49], s[0:1], 16\ns_load_dwordx4 s[52:55], s[0:1], 32')
    e('s_load_dwordx2 s[56:57], s[0:1], 48\ns_load_dwordx2 s[32:33], s[0:1], 56\ns_load_dwordx2 s[34:35], s[0:1], 64')
    e(f'v_lshrrev_b32 v1, 6, v0\ns_and_b32 {sG}, s2, 7\ns_lshr_b32 {sR}, s2, 3\nv_readfirstlane_b32 {sW}, v1')
    e(f's_mov_b32 {sMODE}, 1\ns_mov_b32 {sQT}, 1\ns_mov_b32 {sQS}, 1\ns_mov_b32 {sLAY}, 0\ns_mov_b32 {sEP}, 0\ns_mov_b32 {sGEP}, 0')
    e(f's_mov_b32 {sK}, {KB[0]}\ns_mov_b32 {sAQ}, {AB}')
    e('s_waitcnt lgkmcnt(0)')
    for base, src, size in ((4, 44, 2 * MB), (8, 46, 512 * 3072), (12, 48, 512 * 1024), (16, 52, 512 * 3584), (20, 54, 1792 * 1024), (24, 56, 2 * MB), (28, 34, WS_SIZE)):
        e(f's_mov_b32 s{base}, s{src}\ns_mov_b32 s{base+1}, s{src+1}\ns_mov_b32 s{base+2}, {size}\ns_mov_b32 s{base+3}, 0x20000')
    stamp('begin', 0)
    if 'pf0' in OPT:
        e(f's_cmp_lg_u32 {sW}, 0\ns_cbranch_scc1 L_NPF\nv_lshlrev_b32 v1, 7, v0\ns_lshl_b32 s50, s2, 13\ns_mul_i32 s51, s2, 6144')
        g.raw(f'buffer_load_dword v245, v1, {SX}, s50 offen')
        e('s_mov_b32 exec_hi, 0xffff')
        g.raw(f'buffer_load_dword v245, v1, {SWQ}, s51 offen')
        e('s_mov_b32 exec_hi, -1\nL_NPF:')
    if 'dbgt' in OPT: e('s_memrealtime s[98:99]\ns_memtime s[88:89]\ns_waitcnt lgkmcnt(0)')
    qkv_phase(True)
    e('L_LAYER:')
    attention()
    if STOP == 'att': e('s_endpgm')
    wo_phase()
    if STOP == 'wo': e('s_waitcnt vmcnt(0)\ns_endpgm')
    w1_phase()
    if STOP == 'w1': e('s_waitcnt vmcnt(0)\ns_endpgm')
    w2_phase()
    if 'dbgt' in OPT:
        e(f's_cmp_eq_u32 {sLAY}, 0\ns_cbranch_scc1 L_NDBG\ns_cmp_ge_u32 s2, 8\ns_cbranch_scc1 L_END')
        e('s_memrealtime s[58:59]\ns_memtime s[56:57]\ns_waitcnt lgkmcnt(0)\ns_sub_u32 s58, s58, s98\ns_sub_u32 s56, s56, s88\ns_lshl_b32 s57, s2, 3')
        e(f'v_mov_b32 v1, s57\nv_mov_b32 v2, s58\nv_mov_b32 v3, s56\nglobal_store_dwordx2 v1, v[2:3], {DBG}\nL_NDBG:')
    e(f's_cmp_lg_u32 {sLAY}, 0\ns_cbranch_scc1 L_END')
    if STOP == 'w2': e('s_waitcnt vmcnt(0)\ns_endpgm')
    e(f's_mov_b32 {sEP}, 5\ns_mov_b32 {sLAY}, 1\ns_andn2_b32 {sDY}, {sQT}, {sMODE}\ns_mov_b32 {sQT}, {sMODE}\ns_mov_b32 {sQS}, {sMODE}')
    e(f's_mov_b32 {sK}, {KB[1]}\ns_mul_i32 {sAQ}, {sMODE}, {5 * ASET}\ns_add_u32 {sAQ}, {sAQ}, {AB}')
    qkv_phase(False)
    e('s_branch L_LAYER')
    e('L_END:')
    e('s_endpgm')
    errs = check_hazards(g.ins) + [x for x in check_waits(g.ins) if not any(f"['v{r}'" in x for r in (60, 100, 102, 103, 245)) and not x.endswith('s[16:19], s97 offen')]
    for x in errs: print(x, file=sys.stderr)
    head = f"""; fused 2-layer (MHA + SiLU FFN) block, one persistent launch: 256 workgroups x 8 waves, one per CU
; @launch grid=(256,1,1) block=(512,1,1) lds={LDS}
.amdgcn_target "amdgcn-amd-amdhsa--gfx950"
.text
.globl {K}
.p2align 8
.type {K},@function
"""
    tail = f""".section .rodata,"a"
.p2align 6
.amdhsa_kernel {K}
  .amdhsa_next_free_vgpr 256
  .amdhsa_next_free_sgpr 100
  .amdhsa_accum_offset 256
  .amdhsa_group_segment_fixed_size 0
  .amdhsa_kernarg_size 72
  .amdhsa_user_sgpr_count 2
  .amdhsa_user_sgpr_kernarg_segment_ptr 1
  .amdhsa_system_sgpr_workgroup_id_x 1
.end_amdhsa_kernel
"""
    out = [a for a in sys.argv[1:] if not a.startswith('--')]
    open(out[0] if out else 'out.s', 'w').write(head + g.text() + tail)
    if PROF:
        import json
        json.dump([[k[0], k[1], v] for k, v in stamp_idx.items()], open('stamps.json', 'w'))
    print('instructions:', sum(1 for i in g.ins if i.op), 'errors:', len(errs), file=sys.stderr)
main()
```
